```python
import torch

def _softmax(x, axis=-1):
    return torch.softmax(x, dim=axis)
def _gelu(x):
    return torch.nn.functional.gelu(x, approximate="tanh")
def _silu(x):
    return torch.nn.functional.silu(x)
def _sigmoid(x):
    return torch.sigmoid(x)
def _layernorm(x, axis=-1, eps=1e-5):
    m = x.mean(dim=axis, keepdim=True)
    v = x.var(dim=axis, keepdim=True, unbiased=False)
    return (x - m) / torch.sqrt(v + eps)
def _scatter_add(tgt, idx, src, axis=0):
    return tgt.clone().index_add_(axis, idx, src)
def _segment_sum(src, seg, n):
    out = torch.zeros((n,) + src.shape[1:], dtype=src.dtype)
    return out.index_add_(0, seg, src)
def _pad(x, pw):
    flat = tuple(v for pair in reversed(pw) for v in pair)
    return torch.nn.functional.pad(x, flat)

kernel_name = 'gated_mix__softmax_full_mha__dense_activation_silu__prompt'

def setup_inputs():

    _w = (lambda a: (lambda t: t.to(torch.bfloat16) if t.is_floating_point() else t)(torch.as_tensor(a)))
    def _A_setup():
        B, S, D = 1, 2048, 512
        return {
            "x": _w((lambda *s: torch.randn(*s, dtype=torch.bfloat16) * 0.05)(B, S, D)),
            "wqkv": _w((lambda *s: torch.randn(*s, dtype=torch.bfloat16) * 0.8)(D, 3 * D)),
            "wo": _w((lambda *s: torch.randn(*s, dtype=torch.bfloat16) * 0.05)(D, D)),
        }
    _A_in = _A_setup()

    def _B_setup():
        B, S, D, F = 1, 2048, 512, 1792
        return {
            "x": _w((lambda *s: torch.randn(*s, dtype=torch.bfloat16) * 0.05)(B, S, D)),
            "w1": _w((lambda *s: torch.randn(*s, dtype=torch.bfloat16) * 3.2)(D, F) * (D ** -0.5)),
            "w2": _w((lambda *s: torch.randn(*s, dtype=torch.bfloat16) * 0.8)(F, D) * (F ** -0.5)),
        }
    _B_in = _B_setup()

    return {
        "A_x": _A_in["x"],
        "A_wqkv": _A_in["wqkv"],
        "A_wo": _A_in["wo"],
        "B_x": _B_in["x"],
        "B_w1": _B_in["w1"],
        "B_w2": _B_in["w2"],
        "gate_w": _w((lambda *s: torch.randn(*s, dtype=torch.bfloat16) * 0.05)(512) * 16.0),
    }

def reference(A_x, A_wqkv, A_wo, B_x, B_w1, B_w2, gate_w):
    def _A_ref(x, wqkv, wo):
        B, S, D = x.shape
        H = 32; Dh = D // H
        qkv = (lambda x, *d: x.permute(*d))((x @ wqkv).reshape(B, S, 3, H, Dh), 2, 0, 3, 1, 4)
        q, k, v = qkv[0], qkv[1], qkv[2]
        scale = Dh ** -0.5
        scores = torch.einsum("bhqd,bhkd->bhqk", q, k) * scale
        p = _softmax(scores, axis=-1)
        o = torch.einsum("bhqk,bhkd->bhqd", p, v)
        return (lambda x, *d: x.permute(*d))(o, 0, 2, 1, 3).reshape(B, S, D) @ wo

    def _B_ref(x, w1, w2):
        h = torch.einsum("bsd,df->bsf", x, w1)
        h = _silu(h)
        out = torch.einsum("bsf,fd->bsd", h, w2)
        return out

    x = A_x
    g = _sigmoid((x * gate_w).sum(-1, keepdims=True))
    a = _A_ref(x, A_wqkv, A_wo)
    b = _B_ref(x, B_w1, B_w2)
    return g * a + (1 - g) * b
```

```python
class Asm:
    def __init__(self):
        self.l = []
    def __call__(self, s):
        for x in s.split("\n"):
            x = x.strip()
            if x: self.l.append("  " + x)
    def label(self, s): self.l.append(s + ":")
    def raw(self, s): self.l.append(s)
    def text(self): return "\n".join(self.l) + "\n"

def v(a, n=1): return f"v{a}" if n == 1 else f"v[{a}:{a+n-1}]"
def s(a, n=1): return f"s{a}" if n == 1 else f"s[{a}:{a+n-1}]"

class Cnt:
    def __init__(self, asm, name, maxv):
        self.asm = asm; self.name = name; self.maxv = maxv; self.q = []
    def issue(self, tag): self.q.append(tag)
    def wait(self, tag):
        idx = [i for i, t in enumerate(self.q) if t == tag]
        if not idx: return
        last = idx[-1]
        n = len(self.q) - 1 - last
        n = min(n, self.maxv)
        self.asm(f"s_waitcnt {self.name}({n})")
        self.q = self.q[len(self.q) - n:] if n else []
    def wait_all(self):
        self.asm(f"s_waitcnt {self.name}(0)"); self.q = []

def srd(a, d, base, nbytes):
    a(f"s_mov_b32 s{d}, s{base}")
    a(f"s_and_b32 s{d+1}, s{base+1}, 0xffff")
    a(f"s_mov_b32 s{d+2}, {nbytes}")
    a(f"s_mov_b32 s{d+3}, 0x20000")

def kd(name, vgpr, sgpr=96):
    return f""".p2align 6
.amdhsa_kernel {name}
  .amdhsa_next_free_vgpr {vgpr}
  .amdhsa_next_free_sgpr {sgpr}
  .amdhsa_accum_offset {(vgpr + 3) // 4 * 4}
  .amdhsa_group_segment_fixed_size 0
  .amdhsa_kernarg_size 80
  .amdhsa_user_sgpr_count 2
  .amdhsa_user_sgpr_kernarg_segment_ptr 1
  .amdhsa_system_sgpr_workgroup_id_x 1
  .amdhsa_float_denorm_mode_32 3
.end_amdhsa_kernel
"""
```

```python
import sys, struct
from asmlib import *
import layout as L

NAME = "gated_mix__softmax_full_mha__dense_activation_silu__prompt"
STAMPS = False
ST = "sc1"

def f32(x): return "0x%08x" % struct.unpack("<I", struct.pack("<f", x))[0]
LOG2E = 1.4426950408889634

class Stamper:
    def __init__(self, a, kidx, vreg, srd_ws, swave, stmp=88):
        self.a = a; self.k = kidx; self.v = vreg; self.n = 0; self.srd = srd_ws; self.swave = swave; self.st = stmp
    def init(self):
        if STAMPS: self.a(f"v_mov_b32 v{self.v}, -1")
    def stamp(self, idx=None):
        if not STAMPS: return
        if idx is None: idx = self.n
        self.n = idx + 1
        a = self.a
        a(f"s_memrealtime s[{self.st}:{self.st+1}]")
        a("s_waitcnt lgkmcnt(0)")
        a(f"v_writelane_b32 v{self.v}, s{self.st}, {idx}")
    def flush(self, vtmp):
        if not STAMPS: return
        a = self.a
        a(f"s_lshl_b32 s{self.st}, s2, 3")
        a(f"s_add_u32 s{self.st}, s{self.st}, s{self.swave}")
        a(f"s_lshl_b32 s{self.st}, s{self.st}, 6")
        a(f"s_add_u32 s{self.st}, s{self.st}, {L.WS_STAMP + self.k * 256 * 8 * 64}")
        a(f"v_and_b32 v{vtmp}, 63, v0")
        a(f"v_cmp_gt_u32 vcc, 16, v{vtmp}")
        a(f"v_lshlrev_b32 v{vtmp}, 2, v{vtmp}")
        a(f"s_and_saveexec_b64 s[{self.st+2}:{self.st+3}], vcc")
        a(f"buffer_store_dword v{self.v}, v{vtmp}, s[{self.srd}:{self.srd+3}], s{self.st} offen")
        a(f"s_mov_b64 exec, s[{self.st+2}:{self.st+3}]")

def MF16(d, a_, b_, c=None):
    c = v(d, 4) if c is None else c
    return f"v_mfma_f32_16x16x32_bf16 {v(d,4)}, {v(a_,4)}, {v(b_,4)}, {c}"
def MF32(d, a_, b_, c=None):
    c = v(d, 16) if c is None else c
    return f"v_mfma_f32_32x32x16_bf16 {v(d,16)}, {v(a_,4)}, {v(b_,4)}, {c}"

SLOT = 28672
K1_GATE = 5 * SLOT
K1_LDS = K1_GATE + 1024

def k1():
    a = Asm(); N = "k1_kernel"
    a.raw(f".p2align 8\n.globl {N}\n.type {N},@function"); a.label(N)
    SX, SWQ, SW1, SWS, SW2, SWO, SG = 20, 24, 28, 32, 36, 40, 44
    sW, sMB, sNB = 48, 49, 50
    a("s_cmp_ge_u32 s2, 256"); a(f"s_cbranch_scc1 {N}_end")
    a("s_load_dwordx4 s[4:7], s[0:1], 0")
    a("s_load_dwordx2 s[8:9], s[0:1], 16")
    a("s_load_dwordx4 s[12:15], s[0:1], 32")
    a("s_load_dwordx2 s[10:11], s[0:1], 48")
    a("s_load_dwordx2 s[16:17], s[0:1], 72")
    a("v_lshrrev_b32 v1, 6, v0")
    a("v_and_b32 v2, 63, v0")
    a(f"v_readfirstlane_b32 s{sW}, v1")
    a("s_and_b32 s51, s2, 1"); a("s_lshl_b32 s51, s51, 3"); a("s_bfe_u32 s52, s2, 0x30003"); a(f"s_add_u32 s{sMB}, s51, s52")
    a("s_bfe_u32 s51, s2, 0x20001"); a("s_lshl_b32 s51, s51, 2"); a("s_lshr_b32 s52, s2, 6"); a(f"s_add_u32 s{sNB}, s51, s52")
    st = Stamper(a, 0, 255, SWS, sW); st.init()
    a("s_waitcnt lgkmcnt(0)")
    srd(a, SX, 4, 2048 * 1024); srd(a, SWQ, 6, 512 * 3072); srd(a, SW1, 12, 512 * 3584); srd(a, SWS, 16, L.WS_SIZE)
    srd(a, SG, 10, 1024)
    st.stamp(0)
    a(f"s_cmp_lt_u32 s{sW}, 4"); a(f"s_cbranch_scc1 {N}_comp")
    sw = 53
    a(f"s_sub_u32 s{sw}, s{sW}, 4")
    vL16, vXe, vXo, vWp = 3, 4, 5, 6
    vB = 8
    a(f"v_lshlrev_b32 v{vL16}, 4, v2")
    a(f"s_mov_b32 m0, {K1_GATE}")
    a("v_lshrrev_b32 v16, 3, v2")
    a(f"buffer_load_dwordx4 v{vL16}, s[{SG}:{SG+3}], 0 offen lds")
    vm = Cnt(a, "vmcnt", 63); vm.issue("gate")
    a("v_and_b32 v17, 7, v2")
    a("v_lshrrev_b32 v18, 4, v2")
    a("v_xor_b32 v17, v17, v18")
    a("v_lshlrev_b32 v17, 4, v17")
    a(f"v_lshl_add_u32 v{vXe}, v16, 10, v17")
    a(f"v_xor_b32 v{vXo}, 64, v{vXe}")
    a("v_lshrrev_b32 v16, 2, v2"); a("v_and_b32 v17, 3, v2"); a("v_lshrrev_b32 v18, 5, v2"); a("v_lshlrev_b32 v18, 1, v18")
    a("v_xor_b32 v17, v17, v18"); a("v_lshlrev_b32 v17, 4, v17"); a("v_mul_u32_u24 v16, 3072, v16"); a(f"v_add_u32 v{vWp}, v16, v17")
    sXb, sWb, sBb, sMx, sMw, sMb, sT = 54, 55, 56, 57, 58, 59, 60
    a(f"s_lshl_b32 s{sXb}, s{sMB}, 17"); a(f"s_lshl_b32 s61, s{sw}, 15"); a(f"s_add_u32 s{sXb}, s{sXb}, s61")
    a(f"s_mul_i32 s{sWb}, s{sw}, {16*3072}"); a(f"s_lshl_b32 s61, s{sNB}, 6"); a(f"s_add_u32 s{sWb}, s{sWb}, s61")
    a(f"s_lshl_b32 s{sMx}, s{sw}, 12"); a(f"s_lshl_b32 s{sMw}, s{sw}, 10")
    def stageA(c):
        SB = (c % 5) * SLOT
        for j in range(4):
            a(f"s_add_u32 m0, s{sMx}, {SB + j * 1024}")
            a(f"s_add_u32 s{sT}, s{sXb}, {j * 8192 + c * 128}")
            a(f"buffer_load_dwordx4 v{vXo if j & 1 else vXe}, s[{SX}:{SX+3}], s{sT} offen lds"); vm.issue(("st", c))
        for sg in range(3):
            a(f"s_add_u32 m0, s{sMw}, {SB + 16384 + sg * 4096}")
            a(f"s_add_u32 s{sT}, s{sWb}, {c * 64 * 3072 + sg * 1024}")
            a(f"buffer_load_dwordx4 v{vWp}, s[{SWQ}:{SWQ+3}], s{sT} offen lds"); vm.issue(("st", c))
    def stageB(c):
        SB = (c % 5) * SLOT
        a(f"s_add_u32 s{sT}, s{sBb}, {(c - 8) * 128 * 3584}")
        for j in range(7):
            a(f"s_add_u32 m0, s{sMb}, {SB + j * 1024}")
            a("s_nop 0")
            a(f"buffer_load_dwordx4 v{vB + j}, s[{SW1}:{SW1+3}], s{sT} offen lds"); vm.issue(("st", c))
    for c in range(5): stageA(c)
    a(f"s_mul_i32 s{sBb}, s{sw}, {32*3584}"); a(f"s_mul_i32 s61, s{sNB}, 224"); a(f"s_add_u32 s{sBb}, s{sBb}, s61")
    a(f"s_mul_i32 s{sMb}, s{sw}, 7168")
    for j in range(7):
        a(f"v_add_u32 v16, {64 * j}, v2")
        a("v_mul_u32_u24 v17, 4682, v16"); a("v_lshrrev_b32 v17, 16, v17")
        a("v_mul_u32_u24 v18, 14, v17"); a("v_sub_u32 v18, v16, v18")
        a("v_lshrrev_b32 v19, 1, v18")
        a("v_bfe_u32 v20, v17, 3, 1"); a("v_lshlrev_b32 v20, 2, v20")
        a("v_cmp_ne_u32 vcc, 3, v19"); a("s_nop 1"); a("v_cndmask_b32 v20, 0, v20, vcc")
        a("v_xor_b32 v19, v19, v20")
        a("v_and_b32 v18, 1, v18"); a("v_lshlrev_b32 v18, 4, v18"); a("v_lshl_add_u32 v18, v19, 5, v18")
        a("v_mul_u32_u24 v17, 3584, v17"); a(f"v_add_u32 v{vB + j}, v17, v18")
    srd(a, SW2, 14, 1792 * 1024); srd(a, SWO, 8, 512 * 1024)
    sId, sJ = 62, 64
    a(f"s_lshl_b32 s{sId}, s2, 2"); a(f"s_add_u32 s{sId}, s{sId}, s{sw}")
    BAD = 0x04000000
    for i in range(3):
        if i == 1:
            a(f"s_add_u32 s61, s{sId}, 1024"); a(f"s_cmp_lt_u32 s{sId}, 768"); a(f"s_cselect_b32 s61, s61, s{sId}")
        elif i == 2: a(f"s_and_b32 s61, s{sId}, 511")
        else: a(f"s_mov_b32 s61, s{sId}")
        a("s_lshr_b32 s70, s61, 4"); a("s_and_b32 s71, s61, 15")
        a("s_lshl_b32 s72, s70, 14"); a("s_lshl_b32 s73, s71, 6"); a(f"s_add_u32 s{sJ + 2*i}, s72, s73")
        nks = 32 if i == 2 else 112
        a(f"s_mul_i32 s72, s71, {nks}"); a("s_add_u32 s72, s72, s70"); a("s_lshl_b32 s72, s72, 10")
        a(f"s_add_u32 s{sJ + 2*i + 1}, s72, {L.WS_WO if i == 2 else L.WS_W2}")
    vT2, vTo, vTD = 21, 22, 24
    vTP = 48
    a("v_and_b32 v16, 31, v2"); a("v_lshlrev_b32 v16, 1, v16"); a("v_lshrrev_b32 v17, 5, v2")
    a(f"v_lshl_add_u32 v{vT2}, v17, 13, v16"); a(f"v_lshl_add_u32 v{vTo}, v17, 12, v16")
    for i in range(3):
        S_ = SWO if i == 2 else SW2; vo = vTo if i == 2 else vT2
        a(f"s_add_u32 s{sT}, s{sJ + 2*i}, {8192 if i == 2 else 4096}")
        for j in range(8):
            so = sJ + 2 * i if j < 4 else sT
            a(f"buffer_load_ushort v{vTD + 8*i + j}, v{vo}, s[{S_}:{S_+3}], s{so} offen offset:{(j & 3) * 1024}"); vm.issue("T")
    for sidx in range(12):
        vm.wait(("st", sidx))
        a("s_barrier")
        nx = sidx + 4
        if sidx >= 1 and nx <= 11:
            (stageA if nx < 8 else stageB)(nx)
        if sidx == 5:
            vm.wait("T")
            for i in range(12): a(f"v_lshl_or_b32 v{vTP + i}, v{vTD + 2*i + 1}, 16, v{vTD + 2*i}")
            for i in range(3):
                a(f"buffer_store_dwordx4 {v(vTP + 4*i, 4)}, v{vL16}, s[{SWS}:{SWS+3}], s{sJ + 2*i + 1} offen {ST}"); vm.issue("TS")
        st.stamp(1 + sidx)
    st.flush(16)
    a("s_endpgm")
    a.label(f"{N}_comp")
    XF = 128
    XF = 120
    ACC = 64
    WF = 32
    GF = 60
    vX0, vX1, vW0, vW1, vBp, vB0, vBm, vG = 4, 5, 6, 7, 8, 9, 10, 11
    cX0, cX1, cW0, cW1, cBp, cB0, cBm = 12, 13, 14, 15, 16, 17, 18
    vL16 = 3
    a(f"v_lshlrev_b32 v{vL16}, 4, v2")
    a("v_and_b32 v20, 15, v2"); a("v_lshrrev_b32 v21, 4, v2")
    a("v_lshrrev_b32 v22, 1, v20"); a("v_xor_b32 v22, v22, v21"); a("v_lshlrev_b32 v22, 4, v22")
    a(f"s_lshl_b32 s53, s{sW}, 12")
    a("v_lshl_add_u32 v22, v20, 7, v22"); a(f"v_add_u32 v{vX0}, s53, v22"); a(f"v_xor_b32 v{vX1}, 64, v{vX0}")
    a("v_lshrrev_b32 v22, 2, v20"); a("v_lshl_add_u32 v22, v21, 3, v22")
    a("v_and_b32 v23, 3, v20"); a("v_lshlrev_b32 v23, 3, v23")
    a("v_and_b32 v24, 1, v21")
    a("v_lshl_add_u32 v25, v22, 6, v23"); a(f"v_lshl_add_u32 v{vW0}, v24, 5, v25"); a(f"v_add_u32 v{vW0}, 16384, v{vW0}")
    a(f"v_xor_b32 v{vW1}, 32, v{vW0}")
    a("v_mul_u32_u24 v25, 224, v22"); a(f"v_add_u32 v{vB0}, v25, v23"); a("v_lshlrev_b32 v24, 7, v24")
    a(f"v_add_u32 v{vBp}, v{vB0}, v24"); a(f"v_sub_u32 v{vBm}, v{vB0}, v24")
    a(f"v_lshlrev_b32 v{vG}, 4, v21"); a(f"v_add_u32 v{vG}, {K1_GATE}, v{vG}")
    lg = Cnt(a, "lgkmcnt", 15)
    def setslot(sidx):
        SB = (sidx % 5) * SLOT
        if sidx < 8:
            for c_, b_ in ((cX0, vX0), (cX1, vX1), (cW0, vW0), (cW1, vW1)): a(f"v_add_u32 v{c_}, {SB}, v{b_}")
        else:
            for c_, b_ in ((cBp, vBp), (cB0, vB0), (cBm, vBm)): a(f"v_add_u32 v{c_}, {SB}, v{b_}")
    steps = [(c, ks) for c in range(8) for ks in range(2)] + [(c, ks) for c in range(8, 12) for ks in range(4)]
    def xreg(kidx, tt): return XF + kidx * 8 + tt * 4
    def rdX(n):
        c, ks = steps[n]
        for tt in range(2):
            a(f"ds_read_b128 {v(xreg(n, tt), 4)}, v{cX1 if ks else cX0} offset:{tt * 2048}"); lg.issue(("X", n))
    def rdG(n):
        a(f"ds_read_b128 {v(GF, 4)}, v{vG} offset:{n * 64}"); lg.issue(("G", n))
    def rdW(n, ct):
        c, ks = steps[n]
        for e in range(2):
            if c < 8:
                ad = cW1 if ct & 1 else cW0; off = (ct >> 1) * 4096 + ks * 2048 + e * 256
            else:
                ad = cBp if ct < 3 else (cB0 if ct == 3 else cBm); off = ks * 7168 + e * 896 + ct * 32
            a(f"ds_read_b64_tr_b16 {v(WF + ct * 4 + e * 2, 2)}, v{ad} offset:{off}"); lg.issue(("W", n, ct))
    def acc(ct, tt): return ACC + ct * 8 + tt * 4
    vTmp = 20
    def epilogueA():
        a(f"s_lshl_b32 s54, s{sMB}, 2"); a(f"s_add_u32 s54, s54, s{sW}")
        a(f"s_lshl_b32 s55, s{sNB}, 7"); a("s_add_u32 s55, s55, s54"); a("s_lshl_b32 s55, s55, 10")
        a("v_and_b32 v26, 39, v2"); a("v_and_b32 v27, 8, v2"); a("v_lshl_add_u32 v26, v27, 1, v26")
        a("v_and_b32 v27, 16, v2"); a("v_lshrrev_b32 v27, 1, v27"); a("v_add_u32 v26, v26, v27"); a("v_lshlrev_b32 v26, 4, v26")
        a(f"s_mov_b32 s56, {f32(L.QSCALE)}")
        for ct in range(6):
            R = 20 if (ct & 1) == 0 else 28
            typ = ct >> 1
            if typ == 0:
                for tt in range(2):
                    for r in range(4): a(f"v_mul_f32 v{acc(ct, tt) + r}, s56, v{acc(ct, tt) + r}")
            for tt in range(2):
                for h in range(2):
                    a(f"v_cvt_pk_bf16_f32 v{R + tt * 2 + h}, v{acc(ct, tt) + 2 * h}, v{acc(ct, tt) + 2 * h + 1}")
            base = (L.WS_Q, L.WS_K, L.WS_V)[typ] + (ct & 1) * 65536
            a(f"s_add_u32 s57, s55, {base}")
            if typ < 2:
                a("s_nop 0")
                a(f"v_permlane16_swap_b32 v{R}, v{R + 2}"); a(f"v_permlane16_swap_b32 v{R + 1}, v{R + 3}")
            a(f"buffer_store_dwordx4 {v(R, 4)}, v{26 if typ == 1 else vL16}, s[{SWS}:{SWS+3}], s57 offen {ST}")
        a(f"s_cmp_lg_u32 s{sNB}, 0"); a(f"s_cbranch_scc1 {N}_nogate")
        a("v_and_b32 v24, 16, v2"); a("v_cmp_ne_u32 vcc, 0, v24"); a("s_nop 1")
        a(f"v_cndmask_b32 v24, v{acc(6, 0)}, v{acc(6, 1)}, vcc")
        a(f"v_mul_f32 v24, {f32(-LOG2E)}, v24"); a("v_exp_f32 v24, v24"); a("s_nop 0"); a("v_add_f32 v24, 1.0, v24"); a("v_rcp_f32 v24, v24")
        a("v_and_b32 v25, 31, v2"); a("v_lshlrev_b32 v25, 2, v25"); a("s_lshl_b32 s57, s54, 7"); a(f"s_add_u32 s57, s57, {L.WS_G}")
        a(f"buffer_store_dword v24, v25, s[{SWS}:{SWS+3}], s57 offen {ST}")
        a.label(f"{N}_nogate")
    a("s_barrier")
    st.stamp(1)
    setslot(0)
    rdX(0); rdG(0)
    for ct in range(6): rdW(0, ct)
    for n, (c, ks) in enumerate(steps):
        isA = c < 8
        nct = 6 if isA else 7
        last_in_stage = (n + 1 == len(steps)) or steps[n + 1][0] != c
        nxt = n + 1 if n + 1 < len(steps) else None
        if last_in_stage and nxt is not None:
            if c + 1 <= 7: lg.wait_all()
            a("s_barrier")
            st.stamp(2 + c)
            setslot(c + 1)
        nA = nxt is not None and steps[nxt][0] < 8
        if nA: rdX(nxt)
        first = (n == 0) or (n == 16)
        kidx = n if isA else n - 16
        if isA:
            lg.wait(("X", n)); lg.wait(("G", n))
            for tt in range(2): a(MF16(acc(6, tt), GF, xreg(kidx, tt), "0" if first else None))
            if nA: rdG(nxt)
        for ct in range(nct):
            lg.wait(("W", n, ct))
            for tt in range(2):
                if isA and ct >= 4: a(MF16(acc(ct, tt), xreg(kidx, tt), WF + ct * 4, "0" if first else None))
                else: a(MF16(acc(ct, tt), WF + ct * 4, xreg(kidx, tt), "0" if first else None))
            if nxt is not None: rdW(nxt, ct)
        if n == 15:
            rdW(16, 6)
            a("s_nop 7")
            epilogueA()
            st.stamp(13)
    a("s_nop 7")
    a(f"s_mul_i32 s55, s54, 112"); a(f"s_mul_i32 s56, s{sNB}, 7"); a("s_add_u32 s55, s55, s56"); a("s_lshl_b32 s55, s55, 10")
    a(f"s_add_u32 s55, s55, {L.WS_H}")
    a(f"s_mov_b32 s56, {f32(-LOG2E)}")
    for ct in range(7):
        R = 20 if (ct & 1) == 0 else 24
        T = 32 + (ct & 1) * 8
        A0 = acc(ct, 0)
        for r in range(8): a(f"v_mul_f32 v{T + r}, s56, v{A0 + r}")
        for r in range(8): a(f"v_exp_f32 v{T + r}, v{T + r}")
        for r in range(8): a(f"v_add_f32 v{T + r}, 1.0, v{T + r}")
        for r in range(8): a(f"v_rcp_f32 v{T + r}, v{T + r}")
        for r in range(8): a(f"v_mul_f32 v{T + r}, v{A0 + r}, v{T + r}")
        for h in range(4): a(f"v_cvt_pk_bf16_f32 v{R + h}, v{T + 2 * h}, v{T + 2 * h + 1}")
        a(f"s_add_u32 s57, s55, {ct * 1024}")
        a("s_nop 0")
        a(f"v_permlane16_swap_b32 v{R}, v{R + 2}"); a(f"v_permlane16_swap_b32 v{R + 1}, v{R + 3}")
        a(f"buffer_store_dwordx4 {v(R, 4)}, v{vL16}, s[{SWS}:{SWS+3}], s57 offen {ST}")
    st.stamp(14)
    st.flush(16)
    a.label(f"{N}_end")
    a("s_endpgm")
    return a.text(), kd(N, 256), f"; @launch kernel={N} grid=(256,1,1) block=(512,1,1) lds={K1_LDS}"

K2_V = 65536
K2_RED = K2_V + 64 * 1040
K2_LDS = K2_RED + 16384

def k2():
    a = Asm(); N = "k2_kernel"
    a.raw(f".p2align 8\n.globl {N}\n.type {N},@function"); a.label(N)
    SWS = 8
    sW, sHead, sQB, sTB, sNB = 12, 13, 14, 15, 16
    sGA, sGB, sT, sM, sCnt = 17, 18, 19, 20, 21
    a("s_cmp_ge_u32 s2, 256"); a(f"s_cbranch_scc1 {N}_end")
    a("s_load_dwordx2 s[4:5], s[0:1], 72")
    vLane, vL16, vL16b = 2, 3, 4
    a("v_lshrrev_b32 v1, 6, v0"); a(f"v_and_b32 v{vLane}, 63, v0")
    a(f"v_readfirstlane_b32 s{sW}, v1")
    a(f"v_lshlrev_b32 v{vL16}, 4, v{vLane}"); a(f"v_add_u32 v{vL16b}, 4096, v{vL16}")
    a("s_and_b32 s22, s2, 7"); a("s_lshl_b32 s22, s22, 2"); a("s_bfe_u32 s23, s2, 0x20003"); a(f"s_add_u32 s{sHead}, s22, s23")
    a(f"s_lshr_b32 s{sQB}, s2, 5")
    a(f"s_mov_b32 s{sTB}, s{sHead}"); a(f"s_mov_b32 s{sNB}, s{sQB}")
    st = Stamper(a, 1, 255, SWS, sW); st.init()
    QF, KF, V0, V1 = 8, 12, 16, 20
    PA, PB = 24, 28
    S = (32, 48); NM = 64; O = 80; GA = 96; RING = 112
    vK, vV0, vV1, vGq, vGt = 5, 6, 7, 176, 177
    T = 180
    a("s_waitcnt lgkmcnt(0)")
    srd(a, SWS, 4, L.WS_SIZE)
    st.stamp(0)
    vm = Cnt(a, "vmcnt", 63)
    a(f"s_lshl_b32 s22, s{sHead}, 6"); a(f"s_lshl_b32 s23, s{sQB}, 3"); a("s_add_u32 s22, s22, s23"); a(f"s_add_u32 s22, s22, s{sW}")
    a("s_lshl_b32 s22, s22, 10")
    if L.WS_Q: a(f"s_add_u32 s22, s22, {L.WS_Q}")
    a(f"buffer_load_dwordx4 {v(QF, 4)}, v{vL16}, s[{SWS}:{SWS+3}], s22 offen"); vm.issue("Q")
    a(f"s_and_b32 s22, s{sW}, 1"); a(f"s_lshr_b32 s23, s{sW}, 1")
    a(f"s_mul_i32 s24, s22, {L.WS_V - L.WS_K}"); a(f"s_lshl_b32 s25, s{sHead}, 16"); a("s_add_u32 s24, s24, s25")
    a("s_lshl_b32 s25, s23, 10"); a("s_add_u32 s24, s24, s25"); a(f"s_add_u32 s24, s24, {L.WS_K}")
    a("s_lshl_b32 s26, s22, 4"); a("s_add_u32 s26, s26, 1024")
    a("s_mul_i32 s27, s26, s23"); a(f"s_mul_i32 s28, s22, {K2_V}"); a("s_add_u32 s27, s27, s28")
    a("s_lshl_b32 s26, s26, 2")
    for j in range(16):
        a("s_mov_b32 m0, s27")
        a("s_add_u32 s27, s27, s26")
        a(f"buffer_load_dwordx4 v{vL16}, s[{SWS}:{SWS+3}], s24 offen lds"); vm.issue(("kv", j))
        a("s_add_u32 s24, s24, 4096")
    a(f"v_and_b32 v{T}, 31, v{vLane}"); a(f"v_lshlrev_b32 v{T}, 2, v{T}")
    a(f"s_lshl_b32 s22, s{sQB}, 3"); a(f"s_add_u32 s22, s22, s{sW}"); a("s_lshl_b32 s22, s22, 7"); a(f"s_add_u32 s22, s22, {L.WS_G}")
    a(f"buffer_load_dword v{vGq}, v{T}, s[{SWS}:{SWS+3}], s22 offen"); vm.issue("g")
    a(f"s_bfe_u32 s23, s{sW}, 0x10001")
    a(f"s_lshl_b32 s22, s{sTB}, 1"); a("s_add_u32 s22, s22, s23")
    a("s_lshl_b32 s24, s22, 7"); a(f"s_add_u32 s24, s24, {L.WS_G}")
    a(f"buffer_load_dword v{vGt}, v{T}, s[{SWS}:{SWS+3}], s24 offen"); vm.issue("g")
    a(f"s_lshr_b32 s25, s{sW}, 2"); a("s_mul_i32 s25, s25, 56")
    a("s_mul_i32 s24, s22, 112"); a("s_add_u32 s24, s24, s25"); a("s_lshl_b32 s24, s24, 10"); a(f"s_add_u32 s{sGB}, s24, {L.WS_H}")
    a(f"s_and_b32 s23, s{sW}, 1"); a(f"s_lshl_b32 s24, s{sNB}, 1"); a("s_add_u32 s23, s23, s24")
    a("s_mul_i32 s24, s23, 112"); a("s_add_u32 s24, s24, s25"); a("s_lshl_b32 s24, s24, 10"); a(f"s_add_u32 s{sGA}, s24, {L.WS_W2}")
    a("s_lshl_b32 s29, s22, 4"); a("s_add_u32 s29, s29, s23"); a("s_lshl_b32 s29, s29, 11")
    a(f"s_lshr_b32 s25, s{sW}, 2"); a("s_lshl_b32 s25, s25, 10"); a("s_add_u32 s29, s29, s25"); a(f"s_add_u32 s29, s29, {L.WS_B}")
    def gload(sidx):
        vo = vL16b if sidx >= 4 else vL16
        a(f"buffer_load_dwordx4 {v(RING + 8 * sidx, 4)}, v{vo}, s[{SWS}:{SWS+3}], s{sGA} offen offset:{(sidx & 3) * 1024}")
        a(f"buffer_load_dwordx4 {v(RING + 8 * sidx + 4, 4)}, v{vo}, s[{SWS}:{SWS+3}], s{sGB} offen offset:{(sidx & 3) * 1024}")
    for sidx in range(8):
        gload(sidx); vm.issue("G"); vm.issue("G")
    a(f"s_add_u32 s{sGA}, s{sGA}, 8192"); a(f"s_add_u32 s{sGB}, s{sGB}, 8192")
    a(f"v_mov_b32 v{vK}, v{vL16}")
    a(f"v_and_b32 v{T}, 15, v{vLane}"); a(f"v_lshlrev_b32 v{T}, 4, v{T}"); a(f"v_lshrrev_b32 v{T+1}, 5, v{vLane}")
    a(f"v_lshl_add_u32 v{T}, v{T+1}, 8, v{T}")
    a(f"v_and_b32 v{T+1}, 16, v{vLane}"); a(f"v_cmp_eq_u32 vcc, 0, v{T+1}")
    a(f"v_mov_b32 v{T+2}, 1024"); a(f"v_add_u32 v{T+3}, 512, v{T}")
    a(f"v_cndmask_b32 v{vV0}, v{T+2}, v{T}, vcc"); a(f"v_cndmask_b32 v{vV1}, v{T+2}, v{T+3}, vcc")
    a(f"v_add_u32 v{vV0}, {K2_V}, v{vV0}"); a(f"v_add_u32 v{vV1}, {K2_V}, v{vV1}")
    a(f"v_mul_u32_u24 v{T}, 1040, v{vLane}"); a(f"v_add_u32 v{T}, {K2_V + 1024}, v{T}")
    for r in range(4): a(f"v_mov_b32 v{T + 4 + r}, 0x3f803f80")
    a(f"ds_write_b128 v{T}, {v(T + 4, 4)}")
    for r in range(16): a(f"v_mov_b32 v{GA + r}, 0")
    a("s_waitcnt lgkmcnt(0)")
    vm.wait(("kv", 0))
    a("s_barrier")
    st.stamp(1)
    a(f"ds_read_b128 {v(KF, 4)}, v{vK}")
    a(f"ds_read_b128 {v(V0, 4)}, v{vV0}")
    a(f"ds_read_b128 {v(V1, 4)}, v{vV1}")
    a("s_waitcnt lgkmcnt(2)")
    a(MF32(S[1], KF, QF, "0"))
    a("s_nop 15")
    def maxtree(Sb, dst, first):
        if first:
            a(f"v_max3_f32 v{dst}, v{Sb}, v{Sb+1}, v{Sb+2}"); a(f"v_max_f32 v{dst}, v{dst}, v{Sb+3}"); r0 = 4
        else: r0 = 0
        for r in range(r0, 16, 2): a(f"v_max3_f32 v{dst}, v{dst}, v{Sb+r}, v{Sb+r+1}")
    def finish_max(dst):
        a(f"v_mov_b32 v{dst+1}, v{dst}"); a("s_nop 1")
        a(f"v_permlane32_swap_b32 v{dst}, v{dst+1}"); a("s_nop 0")
        a(f"v_max_f32 v{dst}, v{dst}, v{dst+1}")
        for r in range(16): a(f"v_sub_f32 v{NM + r}, 0, v{dst}")
        a("s_nop 1")
    maxtree(S[1], T, True); finish_max(T)
    a(MF32(S[0], KF, QF, v(NM, 16)))
    a(f"ds_read_b128 {v(KF, 4)}, v{vK} offset:1024")
    a("s_nop 10")
    def E(Sb, r): a(f"v_exp_f32 v{Sb + r}, v{Sb + r}")
    def C(P, Sb, h): a(f"v_cvt_pk_bf16_f32 v{P + h}, v{Sb + 2*h}, v{Sb + 2*h + 1}")
    def tile(t, first, gemm, pre=None):
        Sc = S[t & 1]; Sn = S[(t + 1) & 1]
        E(Sc, 0); E(Sc, 1)
        if not first:
            a("s_waitcnt lgkmcnt(2)")
            a(MF32(O, V1, PB))
            a(f"ds_read_b128 {v(V1, 4)}, v{vV1} offset:{t * 1040}")
        for r in range(2, 6): E(Sc, r)
        if pre: pre()
        a("s_waitcnt lgkmcnt(2)" if not first else "s_waitcnt lgkmcnt(0)")
        a(MF32(Sn, KF, QF, v(NM, 16)))
        a(f"ds_read_b128 {v(KF, 4)}, v{vK} offset:{(t + 2) * 1024}")
        E(Sc, 6); E(Sc, 7)
        for h in range(4): C(PA, Sc, h)
        E(Sc, 8); E(Sc, 9)
        a("s_waitcnt lgkmcnt(2)")
        a(MF32(O, V0, PA, "0" if first else None))
        a(f"ds_read_b128 {v(V0, 4)}, v{vV0} offset:{(t + 1) * 1040}")
        for r in range(10, 14): E(Sc, r)
        if gemm:
            a("s_waitcnt vmcnt(14)")
            a(MF32(GA, RING + 8 * t, RING + 8 * t + 4))
            gload(t)
        E(Sc, 14); E(Sc, 15)
        for h in range(4): C(PB, Sc + 8, h)
    def bar(tag):
        def f():
            vm.wait(tag); a("s_barrier")
        return f
    for t in range(8):
        pre = None
        if t == 2: pre = bar(("kv", 1))
        if t == 6: pre = bar(("kv", 15))
        tile(t, t == 0, False, pre)
    st.stamp(2)
    a(f"s_mov_b32 s{sCnt}, 7")
    a.raw(".p2align 6")
    a.label(f"{N}_loop")
    a(f"v_add_u32 v{vK}, 8192, v{vK}"); a(f"v_add_u32 v{vV0}, 8320, v{vV0}"); a(f"v_add_u32 v{vV1}, 8320, v{vV1}")
    a(f"s_cmp_eq_u32 s{sCnt}, 1")
    a(f"s_cselect_b32 s{sGA}, 0x04000000, s{sGA}"); a(f"s_cselect_b32 s{sGB}, 0x04000000, s{sGB}")
    for t in range(8): tile(t, False, True)
    a(f"s_add_u32 s{sGA}, s{sGA}, 8192"); a(f"s_add_u32 s{sGB}, s{sGB}, 8192")
    a(f"s_sub_u32 s{sCnt}, s{sCnt}, 1"); a(f"s_cmp_lg_u32 s{sCnt}, 0"); a(f"s_cbranch_scc1 {N}_loop")
    a("s_waitcnt lgkmcnt(0)")
    a(MF32(O, V1, PB))
    st.stamp(3)
    a(f"s_and_b32 s22, s{sW}, 3"); a("s_lshl_b32 s22, s22, 12"); a(f"s_add_u32 s22, s22, {K2_RED}")
    a(f"s_lshr_b32 s23, s{sW}, 2"); a("s_lshl_b32 s24, s23, 11")
    a("s_add_u32 s25, s22, s24")
    a("s_xor_b32 s24, s24, 2048"); a("s_add_u32 s26, s22, s24")
    a(f"v_add_u32 v{T}, s25, v{vL16}"); a(f"v_add_u32 v{T+1}, s26, v{vL16}")
    a("s_cmp_eq_u32 s23, 0"); a(f"s_cbranch_scc1 {N}_kh0")
    a(f"ds_write_b128 v{T}, {v(GA, 4)}"); a(f"ds_write_b128 v{T}, {v(GA + 4, 4)} offset:1024")
    a("s_nop 1")
    for r in range(8): a(f"v_mov_b32 v{GA + r}, v{GA + 8 + r}")
    a(f"s_branch {N}_khd")
    a.label(f"{N}_kh0")
    a(f"ds_write_b128 v{T}, {v(GA + 8, 4)}"); a(f"ds_write_b128 v{T}, {v(GA + 12, 4)} offset:1024")
    a.label(f"{N}_khd")
    a(f"v_add_f32 v{T+2}, |v{O}|, |v{O+1}|")
    for r in range(2, 8): a(f"v_add_f32 v{T+2}, v{T+2}, |v{O+r}|")
    a(f"v_mov_b32 v{T+3}, 0x5f800000"); a(f"v_mov_b32 v{T+4}, 0x7e800000")
    a(f"v_cmp_lt_f32 vcc, v{O+8}, v{T+3}"); a(f"v_cmp_lt_f32 s[30:31], v{T+2}, v{T+4}")
    a("s_and_b64 s[30:31], s[30:31], vcc"); a("s_cmp_eq_u64 s[30:31], exec")
    a(f"s_cbranch_scc0 {N}_slow")
    a.label(f"{N}_fin")
    a(f"v_rcp_f32 v{T+2}, v{O+8}")
    a("s_waitcnt lgkmcnt(0)")
    a("s_barrier")
    a(f"ds_read_b128 {v(S[0], 4)}, v{T+1}"); a(f"ds_read_b128 {v(S[0] + 4, 4)}, v{T+1} offset:1024")
    a(f"v_mul_f32 v{T+2}, v{T+2}, v{vGq}")
    for r in range(8): a(f"v_mul_f32 v{O + r}, v{O + r}, v{T+2}")
    for h in range(4): a(f"v_cvt_pk_bf16_f32 v{PA + h}, v{O + 2*h}, v{O + 2*h + 1}")
    a(f"s_lshl_b32 s22, s{sQB}, 3"); a(f"s_add_u32 s22, s22, s{sW}"); a("s_lshl_b32 s22, s22, 5"); a(f"s_add_u32 s22, s22, s{sHead}")
    a("s_lshl_b32 s22, s22, 10"); a(f"s_add_u32 s22, s22, {L.WS_O}")
    a(f"buffer_store_dwordx4 {v(PA, 4)}, v{vL16}, s[{SWS}:{SWS+3}], s22 offen {ST}")
    a(f"v_sub_f32 v{vGt}, 1.0, v{vGt}")
    a("s_waitcnt lgkmcnt(0)")
    for r in range(8): a(f"v_add_f32 v{GA + r}, v{GA + r}, v{S[0] + r}")
    for r in range(8): a(f"v_mul_f32 v{GA + r}, v{GA + r}, v{vGt}")
    for h in range(4): a(f"v_cvt_pk_bf16_f32 v{PB + h}, v{GA + 2*h}, v{GA + 2*h + 1}")
    a(f"buffer_store_dwordx4 {v(PB, 4)}, v{vL16}, s[{SWS}:{SWS+3}], s29 offen {ST}")
    st.stamp(4)
    st.flush(T)
    a.label(f"{N}_end")
    a("s_endpgm")
    a.label(f"{N}_slow")
    M = T + 6
    a(f"v_mov_b32 v{vK}, v{vL16}")
    a(f"v_mov_b32 v{M}, 0xff800000")
    a(f"s_mov_b32 s{sCnt}, 64")
    a.label(f"{N}_slow1")
    a(f"ds_read_b128 {v(KF, 4)}, v{vK}"); a(f"v_add_u32 v{vK}, 1024, v{vK}")
    a("s_waitcnt lgkmcnt(0)")
    a(MF32(S[1], KF, QF, "0")); a("s_nop 15")
    maxtree(S[1], M, False)
    a(f"s_sub_u32 s{sCnt}, s{sCnt}, 1"); a(f"s_cmp_lg_u32 s{sCnt}, 0"); a(f"s_cbranch_scc1 {N}_slow1")
    finish_max(M)
    a(f"v_mov_b32 v{vK}, v{vL16}")
    a(f"v_subrev_u32 v{vV0}, {7 * 8320}, v{vV0}"); a(f"v_subrev_u32 v{vV1}, {7 * 8320}, v{vV1}")
    for r in range(16): a(f"v_mov_b32 v{O + r}, 0")
    a(f"s_mov_b32 s{sCnt}, 64")
    a.label(f"{N}_slow2")
    a(f"ds_read_b128 {v(KF, 4)}, v{vK}"); a(f"ds_read_b128 {v(V0, 4)}, v{vV0}"); a(f"ds_read_b128 {v(V1, 4)}, v{vV1}")
    a(f"v_add_u32 v{vK}, 1024, v{vK}"); a(f"v_add_u32 v{vV0}, 1040, v{vV0}"); a(f"v_add_u32 v{vV1}, 1040, v{vV1}")
    a("s_waitcnt lgkmcnt(0)")
    a(MF32(S[0], KF, QF, v(NM, 16))); a("s_nop 15")
    for r in range(16): E(S[0], r)
    a("s_nop 0")
    for h in range(4): C(PA, S[0], h)
    for h in range(4): C(PB, S[0] + 8, h)
    a("s_nop 1")
    a(MF32(O, V0, PA)); a(MF32(O, V1, PB))
    a(f"s_sub_u32 s{sCnt}, s{sCnt}, 1"); a(f"s_cmp_lg_u32 s{sCnt}, 0"); a(f"s_cbranch_scc1 {N}_slow2")
    a("s_nop 15")
    a(f"s_branch {N}_fin")
    return a.text(), kd(N, 256 if STAMPS else 192), f"; @launch kernel={N} grid=(256,1,1) block=(512,1,1) lds={K2_LDS}"

K3_RED = 131072
K3_LDS = K3_RED + 16384

def k3():
    a = Asm(); N = "k3_kernel"
    a.raw(f".p2align 8\n.globl {N}\n.type {N},@function"); a.label(N)
    SWS, SO = 8, 12
    sW, sTB, sNB = 16, 17, 18
    a("s_cmp_ge_u32 s2, 256"); a(f"s_cbranch_scc1 {N}_end")
    a("s_load_dwordx2 s[4:5], s[0:1], 72"); a("s_load_dwordx2 s[6:7], s[0:1], 56")
    vLane, vL16 = 2, 3
    a("v_lshrrev_b32 v1, 6, v0"); a(f"v_and_b32 v{vLane}, 63, v0")
    a(f"v_readfirstlane_b32 s{sW}, v1")
    a(f"v_lshlrev_b32 v{vL16}, 4, v{vLane}")
    a("s_and_b32 s22, s2, 7"); a("s_lshl_b32 s22, s22, 2"); a("s_bfe_u32 s23, s2, 0x20003"); a(f"s_add_u32 s{sTB}, s22, s23")
    a(f"s_lshr_b32 s{sNB}, s2, 5")
    st = Stamper(a, 2, 127, SWS, sW); st.init()
    a(f"s_and_b32 s22, s{sW}, 1"); a(f"s_bfe_u32 s23, s{sW}, 0x10001"); a(f"s_lshr_b32 s24, s{sW}, 2")
    a("s_cmp_eq_u32 s23, 0")
    a(f"s_mov_b32 s26, {L.WS_WO}"); a(f"s_cselect_b32 s25, s{sTB}, s{sNB}"); a(f"s_cselect_b32 s26, {L.WS_O}, s26")
    a("s_lshl_b32 s25, s25, 1"); a("s_add_u32 s25, s25, s22"); a("s_lshl_b32 s25, s25, 5"); a("s_add_u32 s25, s25, s24")
    a("s_lshl_b32 s25, s25, 10"); a("s_add_u32 s25, s25, s26")
    a(f"s_and_b32 s26, s{sW}, 3"); a("s_lshl_b32 s26, s26, 10"); a("s_lshl_b32 s27, s24, 12"); a("s_add_u32 s26, s26, s27")
    a("s_waitcnt lgkmcnt(0)")
    srd(a, SWS, 4, L.WS_SIZE); srd(a, SO, 6, 2048 * 1024)
    st.stamp(0)
    vm = Cnt(a, "vmcnt", 63)
    for j in range(16):
        a(f"s_add_u32 m0, s26, {j * 8192}")
        a(f"s_add_u32 s27, s25, {j * 2048}")
        a(f"buffer_load_dwordx4 v{vL16}, s[{SWS}:{SWS+3}], s27 offen lds"); vm.issue(("d", j // 4))
    BI, ACC, FA, FB, T = 8, 16, 32, 64, 96
    a(f"s_lshl_b32 s28, s{sTB}, 1"); a("s_add_u32 s28, s28, s23")
    a(f"s_lshl_b32 s29, s{sNB}, 1"); a("s_add_u32 s29, s29, s22")
    a("s_lshl_b32 s30, s28, 4"); a("s_add_u32 s30, s30, s29"); a("s_lshl_b32 s30, s30, 11"); a("s_lshl_b32 s31, s24, 10")
    a("s_add_u32 s30, s30, s31"); a(f"s_add_u32 s30, s30, {L.WS_B}")
    a(f"buffer_load_dwordx4 {v(BI, 4)}, v{vL16}, s[{SWS}:{SWS+3}], s30 offen"); vm.issue("b")
    vA, vBo, vR0, vR1, vOut = 4, 5, 6, 7, 12
    a("s_lshl_b32 s31, s24, 12"); a("s_lshl_b32 s32, s22, 10"); a("s_add_u32 s32, s32, s31"); a("s_add_u32 s32, s32, 2048")
    a(f"v_add_u32 v{vA}, s32, v{vL16}")
    a("s_lshl_b32 s32, s23, 10"); a("s_add_u32 s32, s32, s31"); a(f"v_add_u32 v{vBo}, s32, v{vL16}")
    a(f"s_and_b32 s31, s{sW}, 3"); a("s_lshl_b32 s31, s31, 12"); a(f"s_add_u32 s31, s31, {K3_RED}")
    a("s_lshl_b32 s32, s24, 11"); a("s_add_u32 s33, s31, s32"); a("s_xor_b32 s32, s32, 2048"); a("s_add_u32 s34, s31, s32")
    a(f"v_add_u32 v{vR0}, s33, v{vL16}"); a(f"v_add_u32 v{vR1}, s34, v{vL16}")
    a(f"v_and_b32 v{T}, 31, v{vLane}"); a(f"v_lshrrev_b32 v{T+1}, 5, v{vLane}"); a(f"v_lshlrev_b32 v{T+1}, 4, v{T+1}")
    a(f"v_lshl_add_u32 v{vOut}, v{T}, 10, v{T+1}")
    a("s_lshl_b32 s35, s28, 15"); a("s_lshl_b32 s36, s29, 6"); a("s_add_u32 s35, s35, s36"); a("s_lshl_b32 s36, s24, 5"); a("s_add_u32 s35, s35, s36")
    lg = Cnt(a, "lgkmcnt", 15)
    for g in range(4):
        vm.wait(("d", g)); a("s_barrier")
        st.stamp(1 + g)
        if g == 2:
            a(f"v_add_u32 v{vA}, 0x10000, v{vA}"); a(f"v_add_u32 v{vBo}, 0x10000, v{vBo}")
        for i in range(4):
            off = ((g & 1) * 4 + i) * 8192
            a(f"ds_read_b128 {v(FA + 4 * i + (g & 1) * 16, 4)}, v{vA} offset:{off}"); lg.issue((g, i))
            a(f"ds_read_b128 {v(FB + 4 * i + (g & 1) * 16, 4)}, v{vBo} offset:{off}"); lg.issue((g, i))
        for i in range(4):
            lg.wait((g, i))
            a(MF32(ACC, FA + 4 * i + (g & 1) * 16, FB + 4 * i + (g & 1) * 16, "0" if (g == 0 and i == 0) else None))
    a("s_nop 15")
    a("s_cmp_eq_u32 s24, 0"); a(f"s_cbranch_scc1 {N}_kh0")
    a(f"ds_write_b128 v{vR0}, {v(ACC, 4)}"); a(f"ds_write_b128 v{vR0}, {v(ACC + 4, 4)} offset:1024")
    a("s_nop 1")
    for r in range(8): a(f"v_mov_b32 v{ACC + r}, v{ACC + 8 + r}")
    a(f"s_branch {N}_khd")
    a.label(f"{N}_kh0")
    a(f"ds_write_b128 v{vR0}, {v(ACC + 8, 4)}"); a(f"ds_write_b128 v{vR0}, {v(ACC + 12, 4)} offset:1024")
    a.label(f"{N}_khd")
    a("s_waitcnt vmcnt(0)")
    for h in range(4):
        a(f"v_lshlrev_b32 v{T + 2*h}, 16, v{BI + h}"); a(f"v_and_b32 v{T + 2*h + 1}, 0xffff0000, v{BI + h}")
    for r in range(8): a(f"v_add_f32 v{ACC + r}, v{ACC + r}, v{T + r}")
    a("s_waitcnt lgkmcnt(0)"); a("s_barrier")
    a(f"ds_read_b128 {v(FA, 4)}, v{vR1}"); a(f"ds_read_b128 {v(FA + 4, 4)}, v{vR1} offset:1024")
    a("s_waitcnt lgkmcnt(0)")
    for r in range(8): a(f"v_add_f32 v{ACC + r}, v{ACC + r}, v{FA + r}")
    for h in range(4): a(f"v_cvt_pk_bf16_f32 v{T + h}, v{ACC + 2*h}, v{ACC + 2*h + 1}")
    a("s_nop 1")
    a(f"v_permlane32_swap_b32 v{T}, v{T + 2}"); a(f"v_permlane32_swap_b32 v{T + 1}, v{T + 3}")
    a(f"buffer_store_dwordx4 {v(T, 4)}, v{vOut}, s[{SO}:{SO+3}], s35 offen")
    st.stamp(5)
    st.flush(T + 8)
    a.label(f"{N}_end")
    a("s_endpgm")
    return a.text(), kd(N, 128), f"; @launch kernel={N} grid=(256,1,1) block=(512,1,1) lds={K3_LDS}"

def build(path):
    ks = [k1(), k2(), k3()]
    hdr = open("cdna_kernels/" + NAME + ".s.ref").read().split("\n")
    hdr = [l for l in hdr if l.startswith(";") and "@launch" not in l and "Override" not in l and "grid=ceil" not in l]
    out = "\n".join(hdr) + "\n" + "\n".join(k[2] for k in ks) + "\n"
    out += '.amdgcn_target "amdgcn-amd-amdhsa--gfx950"\n.text\n'
    out += "".join(k[0] for k in ks)
    out += '.section .rodata,"a"\n' + "".join(k[1] for k in ks)
    open(path, "w").write(out)

if __name__ == "__main__":
    if "--stamps" in sys.argv: STAMPS = True
    build(sys.argv[1])
```

```python
class Asm:
    def __init__(self):
        self.l = []
    def __call__(self, s):
        for x in s.split("\n"):
            x = x.strip()
            if x: self.l.append("  " + x)
    def label(self, s): self.l.append(s + ":")
    def raw(self, s): self.l.append(s)
    def text(self): return "\n".join(self.l) + "\n"

def v(a, n=1): return f"v{a}" if n == 1 else f"v[{a}:{a+n-1}]"
def s(a, n=1): return f"s{a}" if n == 1 else f"s[{a}:{a+n-1}]"

class Cnt:
    lenient = False
    def __init__(self, asm, name, maxv):
        self.asm = asm; self.name = name; self.maxv = maxv; self.q = []; self.seen = set()
    def issue(self, tag): self.q.append(tag); self.seen.add(tag)
    def wait(self, tag):
        idx = [i for i, t in enumerate(self.q) if t == tag]
        if not idx:
            assert tag in self.seen or self.lenient, f'wait for never-issued {tag}'
            return
        last = idx[-1]
        n = len(self.q) - 1 - last
        n = min(n, self.maxv)
        self.asm(f"s_waitcnt {self.name}({n})")
        self.q = self.q[len(self.q) - n:] if n else []
    def wait_all(self):
        self.asm(f"s_waitcnt {self.name}(0)"); self.q = []

def srd(a, d, base, nbytes):
    a(f"s_mov_b32 s{d}, s{base}")
    a(f"s_and_b32 s{d+1}, s{base+1}, 0xffff")
    a(f"s_mov_b32 s{d+2}, {nbytes}")
    a(f"s_mov_b32 s{d+3}, 0x20000")

def kd(name, vgpr, sgpr=96):
    return f""".p2align 6
.amdhsa_kernel {name}
  .amdhsa_next_free_vgpr {vgpr}
  .amdhsa_next_free_sgpr {sgpr}
  .amdhsa_accum_offset {(vgpr + 3) // 4 * 4}
  .amdhsa_group_segment_fixed_size 0
  .amdhsa_kernarg_size 80
  .amdhsa_user_sgpr_count 2
  .amdhsa_user_sgpr_kernarg_segment_ptr 1
  .amdhsa_system_sgpr_workgroup_id_x 1
  .amdhsa_float_denorm_mode_32 3
.end_amdhsa_kernel
"""
```

```python
import sys, struct
from asmlib import *
import layout as L

NAME = "gated_mix__softmax_full_mha__dense_activation_silu__prompt"
STAMPS = False
ST = "sc1"
OPT = {}

def f32(x): return "0x%08x" % struct.unpack("<I", struct.pack("<f", x))[0]
LOG2E = 1.4426950408889634

class Filt(Asm):
    def __call__(self, s):
        if OPT.get("k1nocomp") and (s.startswith("v_mfma") or s.startswith("ds_read")): return
        if OPT.get("k1nomfma") and s.startswith("v_mfma"): return
        if OPT.get("nosto") and s.startswith("buffer_store_dwordx4"): return
        if OPT.get("noT") and s.startswith("buffer_load_ushort"): return
        if OPT.get("nods") and s.startswith("ds_read"): return
        if OPT.get("plainst"): s = s.replace(" sc1", "")
        super().__call__(s)

class Stamper:
    def __init__(self, a, kidx, vreg, srd_ws, swave, stmp=88):
        self.a = a; self.k = kidx; self.v = vreg; self.n = 0; self.srd = srd_ws; self.swave = swave; self.st = stmp
    def init(self):
        if STAMPS: self.a(f"v_mov_b32 v{self.v}, -1")
    def stamp(self, idx=None):
        if not STAMPS: return
        if idx is None: idx = self.n
        self.n = idx + 1
        a = self.a
        a(f"s_memrealtime s[{self.st}:{self.st+1}]")
        a(f"s_memtime s[{self.st+2}:{self.st+3}]")
        a("s_waitcnt lgkmcnt(0)")
        a(f"v_writelane_b32 v{self.v}, s{self.st}, {idx}")
        a(f"v_writelane_b32 v{self.v}, s{self.st+2}, {idx + 16}")
    def flush(self, vtmp):
        if not STAMPS: return
        a = self.a
        a(f"s_lshl_b32 s{self.st}, s2, 3")
        a(f"s_add_u32 s{self.st}, s{self.st}, s{self.swave}")
        a(f"s_lshl_b32 s{self.st}, s{self.st}, 7")
        a(f"s_add_u32 s{self.st}, s{self.st}, {L.WS_STAMP + self.k * 256 * 8 * 128}")
        a(f"v_and_b32 v{vtmp}, 63, v0")
        a(f"v_cmp_gt_u32 vcc, 32, v{vtmp}")
        a(f"v_lshlrev_b32 v{vtmp}, 2, v{vtmp}")
        a(f"s_and_saveexec_b64 s[{self.st+2}:{self.st+3}], vcc")
        a(f"buffer_store_dword v{self.v}, v{vtmp}, s[{self.srd}:{self.srd+3}], s{self.st} offen")
        a(f"s_mov_b64 exec, s[{self.st+2}:{self.st+3}]")

def MF16(d, a_, b_, c=None):
    c = v(d, 4) if c is None else c
    return f"v_mfma_f32_16x16x32_bf16 {v(d,4)}, {v(a_,4)}, {v(b_,4)}, {c}"
def MF32(d, a_, b_, c=None):
    c = v(d, 16) if c is None else c
    return f"v_mfma_f32_32x32x16_bf16 {v(d,16)}, {v(a_,4)}, {v(b_,4)}, {c}"

SLOT = 28672
K1_GATE = 5 * SLOT
K1_LDS = K1_GATE + 1024

def k1():
    a = Filt(); N = "k1_kernel"
    a.raw(f".p2align 8\n.globl {N}\n.type {N},@function"); a.label(N)
    SX, SWQ, SW1, SWS, SW2, SWO, SG = 20, 24, 28, 32, 36, 40, 44
    sW, sMB, sNB, sI, sRot = 48, 49, 50, 51, 52
    a("s_cmp_ge_u32 s2, 256"); a(f"s_cbranch_scc1 {N}_end")
    a("s_load_dwordx4 s[4:7], s[0:1], 0")
    a("s_load_dwordx2 s[8:9], s[0:1], 16")
    a("s_load_dwordx4 s[12:15], s[0:1], 32")
    a("s_load_dwordx2 s[10:11], s[0:1], 48")
    a("s_load_dwordx2 s[16:17], s[0:1], 72")
    a("v_lshrrev_b32 v1, 6, v0")
    a("v_and_b32 v2, 63, v0")
    a(f"v_readfirstlane_b32 s{sW}, v1")
    a("s_and_b32 s53, s2, 1"); a("s_lshl_b32 s53, s53, 3"); a("s_bfe_u32 s54, s2, 0x30003"); a(f"s_add_u32 s{sMB}, s53, s54")
    a("s_bfe_u32 s53, s2, 0x20001"); a("s_lshl_b32 s53, s53, 2"); a("s_lshr_b32 s54, s2, 6"); a(f"s_add_u32 s{sNB}, s53, s54")
    if OPT.get("norot"): a(f"s_mov_b32 s{sRot}, 0")
    else:
        a(f"s_lshl_b32 s53, s{sNB}, 1"); a(f"s_add_u32 s53, s53, s{sMB}"); a(f"s_and_b32 s{sRot}, s53, 7")
    a(f"s_and_b32 s{sI}, s{sW}, 3")
    vL16 = 3
    a(f"v_lshlrev_b32 v{vL16}, 4, v2")
    st = Stamper(a, 0, 255, SWS, sW); st.init()
    a(f"s_cmp_ge_u32 s{sW}, 4"); a(f"s_cbranch_scc1 {N}_g1")
    for grp in range(2):
        if grp: a.label(f"{N}_g1")
        k1_group(a, N, grp, st, dict(SX=SX, SWQ=SWQ, SW1=SW1, SWS=SWS, SW2=SW2, SWO=SWO, SG=SG, sW=sW, sMB=sMB, sNB=sNB, sI=sI, sRot=sRot, vL16=vL16))
    a.label(f"{N}_end")
    a("s_endpgm")
    return a.text(), kd(N, 256), f"; @launch kernel={N} grid=(256,1,1) block=(512,1,1) lds={K1_LDS}"

def k1_group(a, N, grp, st, R_):
    SX, SWQ, SW1, SWS, SW2, SWO, SG = (R_[k] for k in ("SX", "SWQ", "SW1", "SWS", "SW2", "SWO", "SG"))
    sW, sMB, sNB, sI, sRot, vL16 = (R_[k] for k in ("sW", "sMB", "sNB", "sI", "sRot", "vL16"))
    vm = Cnt(a, "vmcnt", 63); lg = Cnt(a, "lgkmcnt", 15)
    sBase, sM, sT, sK, sBb, sMb = 55, 56, 57, 58, 59, 60
    vPe, vPo = 4, 5
    vPw = 4
    vB = 6 if grp == 0 else 7
    if grp == 0:
        a("v_lshrrev_b32 v16, 3, v2"); a("v_and_b32 v17, 7, v2"); a("v_lshrrev_b32 v18, 4, v2")
        a("v_xor_b32 v17, v17, v18"); a("v_lshlrev_b32 v17, 4, v17")
        a(f"v_lshl_add_u32 v{vPe}, v16, 10, v17"); a(f"v_xor_b32 v{vPo}, 64, v{vPe}")
        a(f"s_lshl_b32 s{sBase}, s{sMB}, 17"); a(f"s_lshl_b32 s61, s{sI}, 15"); a(f"s_add_u32 s{sBase}, s{sBase}, s61")
        a(f"s_lshl_b32 s{sM}, s{sI}, 12")
        a("s_waitcnt lgkmcnt(0)")
        srd(a, SX, 4, 2048 * 1024)
    else:
        for j in range(3):
            a(f"v_add_u32 v16, {64 * j}, v2")
            a("v_mul_u32_u24 v17, 5462, v16"); a("v_lshrrev_b32 v17, 16, v17")
            a("v_mul_u32_u24 v18, 12, v17"); a("v_sub_u32 v18, v16, v18")
            a("v_bfe_u32 v19, v17, 3, 1"); a("v_lshlrev_b32 v19, 1, v19"); a("v_xor_b32 v18, v18, v19")
            a("v_lshlrev_b32 v18, 4, v18"); a("v_mul_u32_u24 v17, 3072, v17"); a(f"v_add_u32 v{vPw + j}, v17, v18")
        a(f"s_mul_i32 s{sBase}, s{sI}, {16*3072}"); a(f"s_mul_i32 s61, s{sNB}, 192"); a(f"s_add_u32 s{sBase}, s{sBase}, s61")
        a(f"s_mul_i32 s{sM}, s{sI}, 3072")
        a("s_waitcnt lgkmcnt(0)")
        srd(a, SWQ, 6, 512 * 3072); srd(a, SG, 10, 1024)
    def dmaA(c):
        SB = (c % 5) * SLOT; out = []
        pre = [f"s_add_u32 s{sK}, s{sRot}, {c}", f"s_and_b32 s{sK}, s{sK}, 7"]
        if grp == 0:
            pre += [f"s_lshl_b32 s{sK}, s{sK}, 7", f"s_add_u32 s{sK}, s{sK}, s{sBase}"]
            for j in range(4):
                out.append((pre if j == 0 else []) + [f"s_add_u32 m0, s{sM}, {SB + j * 1024}", f"s_add_u32 s{sT}, s{sK}, {j * 8192}",
                    (f"buffer_load_dwordx4 v{vPo if j & 1 else vPe}, s[{SX}:{SX+3}], s{sT} offen lds", ("st", c))])
        else:
            pre += [f"s_mul_i32 s{sK}, s{sK}, {64 * 3072}", f"s_add_u32 s{sK}, s{sK}, s{sBase}"]
            for sg in range(3):
                out.append((pre if sg == 0 else []) + [f"s_add_u32 m0, s{sM}, {SB + 16384 + sg * 1024}", "s_nop 0",
                    (f"buffer_load_dwordx4 v{vPw + sg}, s[{SWQ}:{SWQ+3}], s{sK} offen lds", ("st", c))])
        return out
    def dmaB(c):
        SB = (c % 5) * SLOT; out = []
        pre = [f"s_add_u32 s{sK}, s62, {2 * (c - 8)}", f"s_and_b32 s{sK}, s{sK}, 7", f"s_mul_i32 s{sK}, s{sK}, {64 * 3584}", f"s_add_u32 s{sK}, s{sK}, s{sBb}"]
        js = range(4) if grp == 0 else range(4, 7)
        for n_, j in enumerate(js):
            out.append((pre if n_ == 0 else []) + [f"s_add_u32 m0, s{sMb}, {SB + j * 1024}", "s_nop 0",
                (f"buffer_load_dwordx4 v{vB + n_}, s[{SW1}:{SW1+3}], s{sK} offen lds", ("st", c))])
        return out
    def emit(group):
        for x in group:
            if isinstance(x, tuple):
                if OPT.get("k1noload") and " lds" in x[0]: continue
                a(x[0]); vm.issue(x[1])
            else: a(x)
    if grp == 1:
        a(f"s_mov_b32 m0, {K1_GATE}"); a("s_nop 0")
        a(f"buffer_load_dwordx4 v{vL16}, s[{SG}:{SG+3}], 0 offen lds"); vm.issue(("st", 0))
    for g_ in dmaA(0): emit(g_)
    srd(a, SWS, 16, L.WS_SIZE); srd(a, SW1, 12, 512 * 3584)
    if grp == 0: srd(a, SWQ, 6, 512 * 3072)
    else: srd(a, SX, 4, 2048 * 1024)
    if not OPT.get("nopf"):
        a(f"s_and_b32 s63, s2, 0xf8"); a(f"s_add_u32 s63, s63, s{sW}")
        a("v_lshrrev_b32 v16, 5, v2"); a("v_and_b32 v17, 31, v2")
        a("s_and_b32 s61, s2, 1"); a("s_lshl_b32 s61, s61, 20"); a("s_lshl_b32 s62, s63, 12"); a("s_add_u32 s61, s61, s62")
        a("v_lshlrev_b32 v18, 6, v2")
        a(f"buffer_load_dword v25, v18, s[{SX}:{SX+3}], s61 offen"); vm.issue("pf")
        a("s_bfe_u32 s62, s2, 0x20001")
        a("s_mul_i32 s61, s63, 6144"); a("s_mul_i32 s64, s62, 768"); a("s_add_u32 s61, s61, s64")
        a("v_min_u32 v19, 23, v17"); a("v_mul_u32_u24 v18, 3072, v16"); a("v_lshl_add_u32 v18, v19, 5, v18")
        a(f"buffer_load_dword v25, v18, s[{SWQ}:{SWQ+3}], s61 offen"); vm.issue("pf")
        a("s_mul_i32 s61, s63, 7168"); a("s_mul_i32 s64, s62, 896"); a("s_add_u32 s61, s61, s64")
        a("v_min_u32 v19, 27, v17"); a("v_mul_u32_u24 v18, 3584, v16"); a("v_lshl_add_u32 v18, v19, 5, v18")
        a(f"buffer_load_dword v25, v18, s[{SW1}:{SW1+3}], s61 offen"); vm.issue("pf")
    for g_ in dmaA(1): emit(g_)
    st.stamp(0)
    a(f"s_and_b32 s61, s{sI}, 1"); a(f"s_mul_i32 s{sBb}, s61, {32*3584}"); a(f"s_mul_i32 s61, s{sNB}, 224"); a(f"s_add_u32 s{sBb}, s{sBb}, s61")
    a(f"s_mul_i32 s{sMb}, s{sI}, 7168"); a(f"s_lshr_b32 s62, s{sI}, 1"); a(f"s_add_u32 s62, s62, s{sRot}")
    for n_, j in enumerate(range(4) if grp == 0 else range(4, 7)):
        a(f"v_add_u32 v16, {64 * j}, v2")
        a("v_mul_u32_u24 v17, 4682, v16"); a("v_lshrrev_b32 v17, 16, v17")
        a("v_mul_u32_u24 v18, 14, v17"); a("v_sub_u32 v18, v16, v18")
        a("v_lshrrev_b32 v19, 1, v18")
        a("v_bfe_u32 v20, v17, 3, 1"); a("v_lshlrev_b32 v20, 2, v20")
        a("v_cmp_ne_u32 vcc, 3, v19"); a("v_and_b32 v18, 1, v18"); a("v_lshlrev_b32 v18, 4, v18"); a("v_cndmask_b32 v20, 0, v20, vcc")
        a("v_xor_b32 v19, v19, v20"); a("v_lshl_add_u32 v18, v19, 5, v18")
        a("v_mul_u32_u24 v17, 3584, v17"); a(f"v_add_u32 v{vB + n_}, v17, v18")
    XF = 124
    ACCA = 92
    ACCB = 60
    WF = 44
    GF = 40
    vX0, vX1, vW0, vW1, vBa, vBb_, vG = 10, 11, 12, 13, 14, 15, 16
    cX0, cX1, cW0, cW1, cBa, cBb, cG = 17, 18, 19, 20, 21, 22, 23
    vKo = 24
    TMP = 26
    a("v_and_b32 v26, 15, v2"); a("v_lshrrev_b32 v27, 4, v2")
    a("v_lshrrev_b32 v28, 1, v26"); a("v_xor_b32 v28, v28, v27"); a("v_lshlrev_b32 v28, 4, v28")
    a(f"s_lshl_b32 s61, s{sI}, 12")
    a("v_lshl_add_u32 v28, v26, 7, v28"); a(f"v_add_u32 v{vX0}, s61, v28"); a(f"v_xor_b32 v{vX1}, 64, v{vX0}")
    a("v_lshrrev_b32 v28, 2, v26"); a("v_lshl_add_u32 v28, v27, 3, v28")
    a("v_and_b32 v29, 3, v26"); a("v_lshlrev_b32 v29, 3, v29")
    a("v_and_b32 v30, 1, v27")
    a("v_mul_u32_u24 v31, 192, v28"); a("v_add_u32 v31, v31, v29"); a("v_add_u32 v31, 16384, v31"); a("v_lshlrev_b32 v32, 5, v30")
    a(f"v_add_u32 v{vW0}, v31, v32"); a(f"v_sub_u32 v{vW1}, v31, v32")
    a("v_mul_u32_u24 v31, 224, v28"); a("v_add_u32 v31, v31, v29"); a("v_lshlrev_b32 v30, 7, v30")
    if grp == 0:
        a(f"v_add_u32 v{vBa}, v31, v30"); a(f"v_mov_b32 v{vBb_}, v31")
    else:
        a(f"v_sub_u32 v{vBa}, v31, v30")
        a(f"v_lshlrev_b32 v{vG}, 4, v27"); a(f"v_add_u32 v{vG}, {K1_GATE}, v{vG}")
    def setslot(sidx):
        SB = (sidx % 5) * SLOT
        if sidx < 8:
            for c_, b_ in ((cX0, vX0), (cX1, vX1), (cW0, vW0), (cW1, vW1)): a(f"v_add_u32 v{c_}, {SB}, v{b_}")
            if grp == 1:
                a(f"s_add_u32 s61, s{sRot}, {sidx}"); a("s_and_b32 s61, s61, 7"); a("s_lshl_b32 s61, s61, 7"); a(f"v_add_u32 v{cG}, s61, v{vG}")
        else:
            a(f"v_add_u32 v{cBa}, {SB}, v{vBa}")
            if grp == 0: a(f"v_add_u32 v{cBb}, {SB}, v{vBb_}")
    steps = [(c, ks) for c in range(8) for ks in range(2)] + [(c, ks) for c in range(8, 12) for ks in range(4)]
    tilesA = [0, 1, 2] if grp == 0 else [3, 4, 5]
    tilesB = [0, 1, 2, 3] if grp == 0 else [4, 5, 6]
    def xreg(kidx, tt): return XF + kidx * 8 + tt * 4
    def rdX(n):
        c, ks = steps[n]
        for tt in range(2):
            a(f"ds_read_b128 {v(xreg(n, tt), 4)}, v{cX1 if ks else cX0} offset:{tt * 2048}"); lg.issue(("X", n))
    def rdG(n):
        a(f"ds_read_b128 {v(GF, 4)}, v{cG} offset:{steps[n][1] * 64}"); lg.issue(("G", n))
    def rdW(n, q):
        c, ks = steps[n]
        for e in range(2):
            if c < 8:
                ct = tilesA[q]
                ad = cW1 if ct & 1 else cW0; off = ks * 6144 + e * 768 + ct * 32
            else:
                ct = tilesB[q]
                ad = cBb if ct == 3 else cBa; off = ks * 7168 + e * 896 + ct * 32
            a(f"ds_read_b64_tr_b16 {v(WF + q * 4 + e * 2, 2)}, v{ad} offset:{off}"); lg.issue(("W", n, q))
    def accA(q, tt): return ACCA + q * 8 + tt * 4
    def accB(q, tt): return ACCB + q * 8 + tt * 4
    def epiA():
        out = []
        out.append([f"s_lshl_b32 s64, s{sMB}, 2", f"s_add_u32 s64, s64, s{sI}", "s_lshl_b32 s65, s64, 10",
                    f"s_mul_i32 s63, s{sNB}, 6", f"s_mul_i32 s66, s{sNB}, {6 * 65536}", "s_add_u32 s65, s65, s66"])
        for q, ct in enumerate(tilesA):
            R = TMP + 2 + (q & 1) * 4
            out.append([f"s_cmp_lt_u32 s63, {32 - ct}", f"s_cselect_b32 s66, {f32(L.QSCALE)}, 1.0"] +
                       [f"v_mul_f32 v{accA(q, 0) + r}, s66, v{accA(q, 0) + r}" for r in range(8)])
            out.append([f"v_cvt_pk_bf16_f32 v{R + tt * 2 + h}, v{accA(q, tt) + 2 * h}, v{accA(q, tt) + 2 * h + 1}" for tt in range(2) for h in range(2)])
            out.append([f"s_add_u32 s67, s65, {L.WS_Q + ct * 65536}", "s_nop 0", f"v_permlane16_swap_b32 v{R}, v{R + 2}", f"v_permlane16_swap_b32 v{R + 1}, v{R + 3}",
                       (f"buffer_store_dwordx4 {v(R, 4)}, v{vL16}, s[{SWS}:{SWS+3}], s67 offen {ST}", "sto")])
        if grp == 1:
            out.append(["v_and_b32 v36, 16, v2", "v_cmp_ne_u32 vcc, 0, v36", "v_and_b32 v37, 31, v2", "v_lshlrev_b32 v37, 2, v37",
                        f"v_cndmask_b32 v36, v{accA(3, 0)}, v{accA(3, 1)}, vcc", f"v_mul_f32 v36, {f32(-LOG2E)}, v36", "v_exp_f32 v36, v36"])
            out.append(["s_lshl_b32 s67, s64, 7", "v_add_f32 v36, 1.0, v36", "v_rcp_f32 v36, v36", f"s_add_u32 s67, s67, {L.WS_G}",
                        f"s_cmp_eq_u32 s{sNB}, 0", "s_cselect_b32 s67, s67, 0x04000000",
                        (f"buffer_store_dword v36, v37, s[{SWS}:{SWS+3}], s67 offen {ST}", "sto")])
        return out
    TD = ACCA
    def tjobs_touch():
        out = []
        pre = [f"s_lshl_b32 s68, s2, 2", f"s_add_u32 s68, s68, s{sI}"]
        njob = 2 if grp == 1 else 1
        S_ = SW2 if grp == 1 else SWO
        pre += [f"s_mov_b32 s{S_}, s{14 if grp == 1 else 8}", f"s_and_b32 s{S_+1}, s{15 if grp == 1 else 9}, 0xffff",
                f"s_mov_b32 s{S_+2}, {1792 * 1024 if grp == 1 else 512 * 1024}", f"s_mov_b32 s{S_+3}, 0x20000"]
        pre += ["v_and_b32 v36, 31, v2", "v_lshlrev_b32 v36, 1, v36", "v_lshrrev_b32 v37, 5, v2", f"v_lshl_add_u32 v38, v37, {13 if grp == 1 else 12}, v36",
                "v_and_b32 v36, 15, v2", "v_lshlrev_b32 v39, 10, v36"]
        out.append(pre)
        for i in range(njob):
            g_ = []
            if grp == 0: g_ += ["s_and_b32 s69, s68, 511"]
            elif i == 0: g_ += ["s_mov_b32 s69, s68"]
            else: g_ += ["s_add_u32 s69, s68, 1024", "s_cmp_lt_u32 s68, 768", "s_cselect_b32 s69, s69, s68"]
            g_ += ["s_lshr_b32 s70, s69, 4", "s_and_b32 s71, s69, 15", "s_lshl_b32 s72, s70, 14", "s_lshl_b32 s73, s71, 6", f"s_add_u32 s{77 + 2*i}, s72, s73",
                   f"s_add_u32 s{78 + 2*i}, s{77 + 2*i}, {4096 if grp == 1 else 8192}",
                   f"s_mul_i32 s74, s71, {112 if grp == 1 else 32}", "s_add_u32 s74, s74, s70", "s_lshl_b32 s74, s74, 10",
                   f"s_add_u32 s{75 + i}, s74, {L.WS_W2 if grp == 1 else L.WS_WO}",
                   (f"buffer_load_dword v25, v39, s[{S_}:{S_+3}], s{77 + 2*i} offen", "pf")]
            out.append(g_)
        return out
    def tjobs_load():
        out = []
        njob = 2 if grp == 1 else 1
        S_ = SW2 if grp == 1 else SWO
        for i in range(njob):
            for j in range(0, 8, 2):
                out.append([(f"buffer_load_ushort v{TD + 8*i + jj}, v38, s[{S_}:{S_+3}], s{77 + 2*i + (jj >= 4)} offen offset:{(jj & 3) * 1024}", "T") for jj in (j, j + 1)])
        return out
    def tjobs_store():
        njob = 2 if grp == 1 else 1
        vm.wait("T")
        for i in range(njob):
            for h in range(4): a(f"v_lshl_or_b32 v{TD + 16 + 4*i + h}, v{TD + 8*i + 2*h + 1}, 16, v{TD + 8*i + 2*h}")
            a(f"buffer_store_dwordx4 {v(TD + 16 + 4*i, 4)}, v{vL16}, s[{SWS}:{SWS+3}], s{75 + i} offen {ST}"); vm.issue("sto")
    fill = []
    def filler(k=1):
        for _ in range(k):
            if fill: emit(fill.pop(0))
    vm.wait(("st", 0)); a("s_barrier")
    st.stamp(1)
    setslot(0)
    rdX(0)
    if grp == 1: rdG(0)
    for q in range(3): rdW(0, q)
    LEAD = OPT.get('lead', 2)
    fill += dmaA(2)
    if LEAD >= 3: fill += dmaA(3)
    for n, (c, ks) in enumerate(steps):
        isA = c < 8
        tiles = tilesA if isA else tilesB
        last_in_stage = (n + 1 == len(steps)) or steps[n + 1][0] != c
        nxt = n + 1 if n + 1 < len(steps) else None
        if last_in_stage and nxt is not None:
            while fill and c + 1 <= 7 and OPT.get("drain"): filler()
            if c + 1 <= 10:
                vm.wait(("st", c + 1 if c + 1 < 10 else 11))
                a("s_barrier")
            if c + 1 in (4, 8) or OPT.get("allst"): st.stamp(2 + c)
            setslot(c + 1)
            nxs = [c + 1 + LEAD]
            if c + 1 + LEAD == 10: nxs = [10, 11]
            if c + 1 + LEAD == 11: nxs = []
            for nx in nxs:
                if nx <= 11: fill += (dmaA if nx < 8 else dmaB)(nx)
            if c + 1 == 5: fill += tjobs_touch()
        nA = nxt is not None and steps[nxt][0] < 8
        if nA: rdX(nxt)
        first = (n == 0) or (n == 16)
        kidx = n if isA else n - 16
        if isA: lg.wait(("X", n))
        if isA and grp == 1:
            lg.wait(("G", n))
            for tt in range(2): a(MF16(accA(3, tt), GF, xreg(kidx, tt), "0" if first else None))
            if nA: rdG(nxt)
            filler()
        for q, ct in enumerate(tiles):
            lg.wait(("W", n, q))
            for tt in range(2):
                ac = accA(q, tt) if isA else accB(q, tt)
                a(MF16(ac, WF + q * 4, xreg(kidx, tt), "0" if first else None))
            if nxt is not None: rdW(nxt, q)
            filler(1)
        if n == 15:
            if grp == 0: rdW(16, 3)
            fill += epiA()
        if n == 19: fill += tjobs_load()
        if n == 28:
            while fill: filler()
            tjobs_store()
    st.stamp(13)
    a(f"s_mul_i32 s65, s64, 112"); a(f"s_mul_i32 s66, s{sNB}, 7"); a("s_add_u32 s65, s65, s66"); a("s_lshl_b32 s65, s65, 10")
    a(f"s_add_u32 s65, s65, {L.WS_H}")
    a(f"s_mov_b32 s66, {f32(-LOG2E)}")
    a("s_nop 1")
    for q, ct in enumerate(tilesB):
        R = 28 if (q & 1) == 0 else 32
        T = XF + (q & 1) * 8
        A0 = accB(q, 0)
        for r in range(8): a(f"v_mul_f32 v{T + r}, s66, v{A0 + r}")
        for r in range(8): a(f"v_exp_f32 v{T + r}, v{T + r}")
        for r in range(8): a(f"v_add_f32 v{T + r}, 1.0, v{T + r}")
        for r in range(8): a(f"v_rcp_f32 v{T + r}, v{T + r}")
        for r in range(8): a(f"v_mul_f32 v{T + r}, v{A0 + r}, v{T + r}")
        for h in range(4): a(f"v_cvt_pk_bf16_f32 v{R + h}, v{T + 2 * h}, v{T + 2 * h + 1}")
        a(f"s_add_u32 s67, s65, {ct * 1024}")
        a("s_nop 0")
        a(f"v_permlane16_swap_b32 v{R}, v{R + 2}"); a(f"v_permlane16_swap_b32 v{R + 1}, v{R + 3}")
        a(f"buffer_store_dwordx4 {v(R, 4)}, v{vL16}, s[{SWS}:{SWS+3}], s67 offen {ST}")
    st.stamp(14)
    st.flush(26)
    a("s_endpgm")

K2_V = 65536
K2_RED = K2_V + 64 * 1040
K2_LDS = K2_RED + 16384

def k2():
    a = Asm(); N = "k2_kernel"
    a.raw(f".p2align 8\n.globl {N}\n.type {N},@function"); a.label(N)
    SWS = 8
    sW, sHead, sQB, sTB, sNB = 12, 13, 14, 15, 16
    sGA, sGB, sT, sM, sCnt = 17, 18, 19, 20, 21
    a("s_cmp_ge_u32 s2, 256"); a(f"s_cbranch_scc1 {N}_end")
    a("s_load_dwordx2 s[4:5], s[0:1], 72")
    vLane, vL16, vL16b = 2, 3, 4
    a("v_lshrrev_b32 v1, 6, v0"); a(f"v_and_b32 v{vLane}, 63, v0")
    a(f"v_readfirstlane_b32 s{sW}, v1")
    a(f"v_lshlrev_b32 v{vL16}, 4, v{vLane}"); a(f"v_add_u32 v{vL16b}, 4096, v{vL16}")
    a("s_and_b32 s22, s2, 7"); a("s_lshl_b32 s22, s22, 2"); a("s_bfe_u32 s23, s2, 0x20003"); a(f"s_add_u32 s{sHead}, s22, s23")
    a(f"s_lshr_b32 s{sQB}, s2, 5")
    a(f"s_mov_b32 s{sTB}, s{sHead}"); a(f"s_mov_b32 s{sNB}, s{sQB}")
    st = Stamper(a, 1, 255, SWS, sW); st.init()
    QF, KF, V0, V1 = 8, 12, 16, 20
    PA, PB = 24, 28
    S = (32, 48); NM = 64; O = 80; GA = 96; RING = 112
    vK, vGq, vGt = 5, 176, 177
    vV = 178
    T = 184
    a("s_waitcnt lgkmcnt(0)")
    srd(a, SWS, 4, L.WS_SIZE)
    st.stamp(0)
    vm = Cnt(a, "vmcnt", 63)
    a(f"s_lshl_b32 s22, s{sHead}, 6"); a(f"s_lshl_b32 s23, s{sQB}, 3"); a("s_add_u32 s22, s22, s23"); a(f"s_add_u32 s22, s22, s{sW}")
    a("s_lshl_b32 s22, s22, 10")
    if L.WS_Q: a(f"s_add_u32 s22, s22, {L.WS_Q}")
    a(f"buffer_load_dwordx4 {v(QF, 4)}, v{vL16}, s[{SWS}:{SWS+3}], s22 offen"); vm.issue("Q")
    a(f"s_and_b32 s22, s{sW}, 1"); a(f"s_lshr_b32 s23, s{sW}, 1")
    a(f"s_mul_i32 s24, s22, {L.WS_V - L.WS_K}"); a(f"s_lshl_b32 s25, s{sHead}, 16"); a("s_add_u32 s24, s24, s25")
    a("s_lshl_b32 s25, s23, 10"); a("s_add_u32 s24, s24, s25"); a(f"s_add_u32 s24, s24, {L.WS_K}")
    a("s_lshl_b32 s26, s22, 4"); a("s_add_u32 s26, s26, 1024")
    a("s_mul_i32 s27, s26, s23"); a(f"s_mul_i32 s28, s22, {K2_V}"); a("s_add_u32 s27, s27, s28")
    a("s_lshl_b32 s26, s26, 2")
    if OPT.get("k2norot"): a("s_mov_b32 s32, 0")
    else: a(f"s_lshl_b32 s32, s{sQB}, 13")
    def kvdma(j):
        a("s_mov_b32 m0, s27")
        a("s_add_u32 s33, s24, s32")
        a(f"buffer_load_dwordx4 v{vL16}, s[{SWS}:{SWS+3}], s33 offen lds"); vm.issue(("kv", j))
        a("s_add_u32 s27, s27, s26")
        a("s_add_u32 s32, s32, 4096"); a("s_and_b32 s32, s32, 0xffff")
    kvdma(0); kvdma(1)
    a(f"s_bfe_u32 s23, s{sW}, 0x10001")
    a(f"s_lshl_b32 s22, s{sTB}, 1"); a("s_add_u32 s22, s22, s23")
    a("s_lshl_b32 s35, s22, 7"); a(f"s_add_u32 s35, s35, {L.WS_G}")
    a(f"s_lshl_b32 s34, s{sQB}, 3"); a(f"s_add_u32 s34, s34, s{sW}"); a("s_lshl_b32 s34, s34, 7"); a(f"s_add_u32 s34, s34, {L.WS_G}")
    def gates():
        a(f"v_and_b32 v{T}, 31, v{vLane}"); a(f"v_lshlrev_b32 v{T}, 2, v{T}")
        a(f"buffer_load_dword v{vGq}, v{T}, s[{SWS}:{SWS+3}], s34 offen"); vm.issue("g")
        a(f"buffer_load_dword v{vGt}, v{T}, s[{SWS}:{SWS+3}], s35 offen"); vm.issue("g")
    a(f"s_lshr_b32 s25, s{sW}, 2"); a("s_mul_i32 s25, s25, 56")
    a("s_mul_i32 s36, s22, 112"); a("s_add_u32 s36, s36, s25"); a("s_lshl_b32 s36, s36, 10"); a(f"s_add_u32 s{sGB}, s36, {L.WS_H}")
    a(f"s_and_b32 s23, s{sW}, 1"); a(f"s_lshl_b32 s36, s{sNB}, 1"); a("s_add_u32 s23, s23, s36")
    a("s_mul_i32 s36, s23, 112"); a("s_add_u32 s36, s36, s25"); a("s_lshl_b32 s36, s36, 10"); a(f"s_add_u32 s{sGA}, s36, {L.WS_W2}")
    a("s_lshl_b32 s29, s22, 4"); a("s_add_u32 s29, s29, s23"); a("s_lshl_b32 s29, s29, 11")
    a(f"s_lshr_b32 s25, s{sW}, 2"); a("s_lshl_b32 s25, s25, 10"); a("s_add_u32 s29, s29, s25"); a(f"s_add_u32 s29, s29, {L.WS_B}")
    def gload(sidx):
        vo = vL16b if sidx >= 4 else vL16
        a(f"buffer_load_dwordx4 {v(RING + 8 * sidx, 4)}, v{vo}, s[{SWS}:{SWS+3}], s{sGA} offen offset:{(sidx & 3) * 1024}")
        a(f"buffer_load_dwordx4 {v(RING + 8 * sidx + 4, 4)}, v{vo}, s[{SWS}:{SWS+3}], s{sGB} offen offset:{(sidx & 3) * 1024}")
    a(f"v_mov_b32 v{vK}, v{vL16}")
    a(f"v_bfe_u32 v{T}, v{vLane}, 1, 1"); a(f"v_lshlrev_b32 v{T+4}, 3, v{T}"); a(f"v_add_u32 v{T+4}, {K2_V + 1024}, v{T+4}")
    a(f"v_lshlrev_b32 v{T}, 9, v{T}")
    a(f"v_bfe_u32 v{T+1}, v{vLane}, 2, 2"); a(f"v_lshl_add_u32 v{T}, v{T+1}, 4, v{T}")
    a(f"v_lshrrev_b32 v{T+1}, 5, v{vLane}"); a(f"v_lshl_add_u32 v{T}, v{T+1}, 6, v{T}")
    a(f"v_and_b32 v{T+1}, 1, v{vLane}"); a(f"v_lshl_add_u32 v{T}, v{T+1}, 3, v{T}")
    a(f"v_and_b32 v{T+1}, 16, v{vLane}"); a(f"v_cmp_eq_u32 vcc, 0, v{T+1}")
    for q in range(4): a(f"v_add_u32 v{T+5+q}, {K2_V + q * 128}, v{T}")
    for q in range(4): a(f"v_cndmask_b32 v{vV + q}, v{T+4}, v{T+5+q}, vcc")
    a(f"v_mul_u32_u24 v{T}, 1040, v{vLane}"); a(f"v_add_u32 v{T}, {K2_V + 1024}, v{T}")
    a(f"v_mov_b32 v{T + 4}, 0x3f80")
    for r in range(1, 4): a(f"v_mov_b32 v{T + 4 + r}, 0")
    a(f"ds_write_b128 v{T}, {v(T + 4, 4)}")
    def rdV(t, off):
        R = V1 if t else V0
        for jj in range(2): a(f"ds_read_b64_tr_b16 {v(R + 2 * jj, 2)}, v{vV + 2 * t + jj} offset:{off}")
    for r in range(16): a(f"v_mov_b32 v{GA + r}, 0")
    a("s_waitcnt lgkmcnt(0)")
    vm.wait(("kv", 0))
    a("s_barrier")
    st.stamp(1)
    a(f"ds_read_b128 {v(KF, 4)}, v{vK}")
    rdV(0, 0); rdV(1, 0)
    a("s_waitcnt lgkmcnt(4)")
    a(MF32(S[1], KF, QF, "0"))
    a("s_nop 15")
    def maxtree(Sb, dst, first):
        if first:
            a(f"v_max3_f32 v{dst}, v{Sb}, v{Sb+1}, v{Sb+2}"); a(f"v_max_f32 v{dst}, v{dst}, v{Sb+3}"); r0 = 4
        else: r0 = 0
        for r in range(r0, 16, 2): a(f"v_max3_f32 v{dst}, v{dst}, v{Sb+r}, v{Sb+r+1}")
    def finish_max(dst):
        a(f"v_mov_b32 v{dst+1}, v{dst}"); a("s_nop 1")
        a(f"v_permlane32_swap_b32 v{dst}, v{dst+1}"); a("s_nop 0")
        a(f"v_max_f32 v{dst}, v{dst}, v{dst+1}")
        for r in range(16): a(f"v_sub_f32 v{NM + r}, 0, v{dst}")
        a("s_nop 1")
    maxtree(S[1], T, True); finish_max(T)
    a(MF32(S[0], KF, QF, v(NM, 16)))
    a(f"ds_read_b128 {v(KF, 4)}, v{vK} offset:1024")
    a("s_nop 10")
    def E(Sb, r):
        if OPT.get("noexp"): a(f"v_max3_f32 v{Sb + r}, v{Sb + r}, v{Sb + r}, v{Sb + r}"); a(f"v_max3_f32 v{Sb + r}, v{Sb + r}, v{Sb + r}, v{Sb + r}")
        else: a(f"v_exp_f32 v{Sb + r}, v{Sb + r}")
    def C(P, Sb, h): a(f"v_cvt_pk_bf16_f32 v{P + h}, v{Sb + 2*h}, v{Sb + 2*h + 1}")
    def tile(t, first, gemm, pre=None, c0=False):
        Sc = S[t & 1]; Sn = S[(t + 1) & 1]
        E(Sc, 0); E(Sc, 1)
        if not first:
            a("s_waitcnt lgkmcnt(3)")
            if not OPT.get("noPV"): a(MF32(O, V1, PB))
            rdV(1, t * 1040)
        for r in range(2, 6): E(Sc, r)
        if pre: pre()
        a("s_waitcnt lgkmcnt(4)" if not first else "s_waitcnt lgkmcnt(0)")
        if not OPT.get("noQK"): a(MF32(Sn, KF, QF, v(NM, 16)))
        a(f"ds_read_b128 {v(KF, 4)}, v{vK} offset:{(t + 2) * 1024}")
        if c0 and t < 7: kvdma(2 * t + 2)
        E(Sc, 6); E(Sc, 7)
        for h in range(4): C(PA, Sc, h)
        if c0 and t < 7: kvdma(2 * t + 3)
        if c0 and t == 7: gates()
        E(Sc, 8); E(Sc, 9)
        a("s_waitcnt lgkmcnt(3)")
        if first or not OPT.get("noPV"): a(MF32(O, V0, PA, "0" if first else None))
        rdV(0, (t + 1) * 1040)
        for r in range(10, 14): E(Sc, r)
        if gemm and not OPT.get("nogemm"):
            if not OPT.get("nowait"): a("s_waitcnt vmcnt(14)")
            a(MF32(GA, RING + 8 * t, RING + 8 * t + 4))
            if not OPT.get("noload"): gload(t)
        if c0:
            gload(t); vm.issue("G"); vm.issue("G")
        E(Sc, 14); E(Sc, 15)
        for h in range(4): C(PB, Sc + 8, h)
    def bar(tag):
        def f():
            vm.wait(tag); a("s_barrier")
        return f
    for t in range(8):
        pre = None
        if t == 2: pre = bar(("kv", 1))
        if t == 6: pre = bar(("kv", 5))
        tile(t, t == 0, False, pre, True)
    a(f"s_add_u32 s{sGA}, s{sGA}, 8192"); a(f"s_add_u32 s{sGB}, s{sGB}, 8192")
    st.stamp(2)
    a(f"s_mov_b32 s{sCnt}, 7")
    a.raw(".p2align 6")
    a.label(f"{N}_loop")
    a(f"v_add_u32 v{vK}, 8192, v{vK}")
    for q in range(4): a(f"v_add_u32 v{vV + q}, 8320, v{vV + q}")
    a(f"s_cmp_eq_u32 s{sCnt}, 1")
    a(f"s_cselect_b32 s{sGA}, 0x04000000, s{sGA}"); a(f"s_cselect_b32 s{sGB}, 0x04000000, s{sGB}")
    for t in range(8): tile(t, False, True)
    a(f"s_add_u32 s{sGA}, s{sGA}, 8192"); a(f"s_add_u32 s{sGB}, s{sGB}, 8192")
    a(f"s_cmp_lg_u32 s{sCnt}, 7"); a(f"s_cbranch_scc1 {N}_nobar")
    a("s_barrier")
    a.label(f"{N}_nobar")
    a(f"s_sub_u32 s{sCnt}, s{sCnt}, 1"); a(f"s_cmp_lg_u32 s{sCnt}, 0"); a(f"s_cbranch_scc1 {N}_loop")
    a("s_waitcnt lgkmcnt(0)")
    a(MF32(O, V1, PB))
    st.stamp(3)
    a(f"s_and_b32 s22, s{sW}, 3"); a("s_lshl_b32 s22, s22, 12"); a(f"s_add_u32 s22, s22, {K2_RED}")
    a(f"s_lshr_b32 s23, s{sW}, 2"); a("s_lshl_b32 s24, s23, 11")
    a("s_add_u32 s25, s22, s24")
    a("s_xor_b32 s24, s24, 2048"); a("s_add_u32 s26, s22, s24")
    a(f"v_add_u32 v{T}, s25, v{vL16}"); a(f"v_add_u32 v{T+1}, s26, v{vL16}")
    a("s_cmp_eq_u32 s23, 0"); a(f"s_cbranch_scc1 {N}_kh0")
    a(f"ds_write_b128 v{T}, {v(GA, 4)}"); a(f"ds_write_b128 v{T}, {v(GA + 4, 4)} offset:1024")
    a("s_nop 1")
    for r in range(8): a(f"v_mov_b32 v{GA + r}, v{GA + 8 + r}")
    a(f"s_branch {N}_khd")
    a.label(f"{N}_kh0")
    a(f"ds_write_b128 v{T}, {v(GA + 8, 4)}"); a(f"ds_write_b128 v{T}, {v(GA + 12, 4)} offset:1024")
    a.label(f"{N}_khd")
    a(f"v_add_f32 v{T+2}, |v{O}|, |v{O+1}|")
    for r in range(2, 8): a(f"v_add_f32 v{T+2}, v{T+2}, |v{O+r}|")
    a(f"v_mov_b32 v{T+3}, 0x5f800000"); a(f"v_mov_b32 v{T+4}, 0x7e800000")
    a(f"v_cmp_lt_f32 vcc, v{O+8}, v{T+3}"); a(f"v_cmp_lt_f32 s[30:31], v{T+2}, v{T+4}")
    a("s_and_b64 s[30:31], s[30:31], vcc"); a("s_cmp_eq_u64 s[30:31], exec")
    if not (OPT.get("zrows") or OPT.get("noPV") or OPT.get("noQK") or OPT.get("noexp")): a(f"s_cbranch_scc0 {N}_slow")
    a.label(f"{N}_fin")
    a(f"v_rcp_f32 v{T+2}, v{O+8}")
    a("s_waitcnt lgkmcnt(0)")
    a("s_barrier")
    a(f"ds_read_b128 {v(S[0], 4)}, v{T+1}"); a(f"ds_read_b128 {v(S[0] + 4, 4)}, v{T+1} offset:1024")
    a(f"v_mul_f32 v{T+2}, v{T+2}, v{vGq}")
    for r in range(8): a(f"v_mul_f32 v{O + r}, v{O + r}, v{T+2}")
    for h in range(4): a(f"v_cvt_pk_bf16_f32 v{PA + h}, v{O + 2*h}, v{O + 2*h + 1}")
    a(f"s_lshl_b32 s22, s{sQB}, 3"); a(f"s_add_u32 s22, s22, s{sW}"); a("s_lshl_b32 s22, s22, 5"); a(f"s_add_u32 s22, s22, s{sHead}")
    a("s_lshl_b32 s22, s22, 10"); a(f"s_add_u32 s22, s22, {L.WS_O}")
    a(f"buffer_store_dwordx4 {v(PA, 4)}, v{vL16}, s[{SWS}:{SWS+3}], s22 offen {ST}")
    a(f"v_sub_f32 v{vGt}, 1.0, v{vGt}")
    a("s_waitcnt lgkmcnt(0)")
    for r in range(8): a(f"v_add_f32 v{GA + r}, v{GA + r}, v{S[0] + r}")
    for r in range(8): a(f"v_mul_f32 v{GA + r}, v{GA + r}, v{vGt}")
    for h in range(4): a(f"v_cvt_pk_bf16_f32 v{PB + h}, v{GA + 2*h}, v{GA + 2*h + 1}")
    a(f"buffer_store_dwordx4 {v(PB, 4)}, v{vL16}, s[{SWS}:{SWS+3}], s29 offen {ST}")
    st.stamp(4)
    st.flush(T)
    a.label(f"{N}_end")
    a("s_endpgm")
    a.label(f"{N}_slow")
    M = T + 6
    a(f"v_mov_b32 v{vK}, v{vL16}")
    a(f"v_mov_b32 v{M}, 0xff800000")
    a(f"s_mov_b32 s{sCnt}, 64")
    a.label(f"{N}_slow1")
    a(f"ds_read_b128 {v(KF, 4)}, v{vK}"); a(f"v_add_u32 v{vK}, 1024, v{vK}")
    a("s_waitcnt lgkmcnt(0)")
    a(MF32(S[1], KF, QF, "0")); a("s_nop 15")
    maxtree(S[1], M, False)
    a(f"s_sub_u32 s{sCnt}, s{sCnt}, 1"); a(f"s_cmp_lg_u32 s{sCnt}, 0"); a(f"s_cbranch_scc1 {N}_slow1")
    finish_max(M)
    a(f"v_mov_b32 v{vK}, v{vL16}")
    for q in range(4): a(f"v_subrev_u32 v{vV + q}, {7 * 8320}, v{vV + q}")
    for r in range(16): a(f"v_mov_b32 v{O + r}, 0")
    a(f"s_mov_b32 s{sCnt}, 64")
    a.label(f"{N}_slow2")
    a(f"ds_read_b128 {v(KF, 4)}, v{vK}"); rdV(0, 0); rdV(1, 0)
    a(f"v_add_u32 v{vK}, 1024, v{vK}")
    for q in range(4): a(f"v_add_u32 v{vV + q}, 1040, v{vV + q}")
    a("s_waitcnt lgkmcnt(0)")
    a(MF32(S[0], KF, QF, v(NM, 16))); a("s_nop 15")
    for r in range(16): E(S[0], r)
    a("s_nop 0")
    for h in range(4): C(PA, S[0], h)
    for h in range(4): C(PB, S[0] + 8, h)
    a("s_nop 1")
    a(MF32(O, V0, PA)); a(MF32(O, V1, PB))
    a(f"s_sub_u32 s{sCnt}, s{sCnt}, 1"); a(f"s_cmp_lg_u32 s{sCnt}, 0"); a(f"s_cbranch_scc1 {N}_slow2")
    a("s_nop 15")
    a(f"s_branch {N}_fin")
    return a.text(), kd(N, 256 if STAMPS else 200), f"; @launch kernel={N} grid=(256,1,1) block=(512,1,1) lds={K2_LDS}"

K3_RED = 131072
K3_LDS = K3_RED + 16384

def k3():
    a = Asm(); N = "k3_kernel"
    a.raw(f".p2align 8\n.globl {N}\n.type {N},@function"); a.label(N)
    SWS, SO = 8, 12
    sW, sTB, sNB = 16, 17, 18
    a("s_cmp_ge_u32 s2, 256"); a(f"s_cbranch_scc1 {N}_end")
    a("s_load_dwordx2 s[4:5], s[0:1], 72"); a("s_load_dwordx2 s[6:7], s[0:1], 56")
    vLane, vL16 = 2, 3
    a("v_lshrrev_b32 v1, 6, v0"); a(f"v_and_b32 v{vLane}, 63, v0")
    a(f"v_readfirstlane_b32 s{sW}, v1")
    a(f"v_lshlrev_b32 v{vL16}, 4, v{vLane}")
    a("s_and_b32 s22, s2, 7"); a("s_lshl_b32 s22, s22, 2"); a("s_bfe_u32 s23, s2, 0x20003"); a(f"s_add_u32 s{sTB}, s22, s23")
    a(f"s_lshr_b32 s{sNB}, s2, 5")
    st = Stamper(a, 2, 127, SWS, sW); st.init()
    a(f"s_and_b32 s22, s{sW}, 1"); a(f"s_bfe_u32 s23, s{sW}, 0x10001"); a(f"s_lshr_b32 s24, s{sW}, 2")
    a("s_cmp_eq_u32 s23, 0")
    a(f"s_mov_b32 s26, {L.WS_WO}"); a(f"s_cselect_b32 s25, s{sTB}, s{sNB}"); a(f"s_cselect_b32 s26, {L.WS_O}, s26")
    a("s_lshl_b32 s25, s25, 1"); a("s_add_u32 s25, s25, s22"); a("s_lshl_b32 s25, s25, 5"); a("s_add_u32 s25, s25, s24")
    a("s_lshl_b32 s25, s25, 10"); a("s_add_u32 s25, s25, s26")
    a(f"s_and_b32 s26, s{sW}, 3"); a("s_lshl_b32 s26, s26, 10"); a("s_lshl_b32 s27, s24, 12"); a("s_add_u32 s26, s26, s27")
    a("s_waitcnt lgkmcnt(0)")
    srd(a, SWS, 4, L.WS_SIZE); srd(a, SO, 6, 2048 * 1024)
    st.stamp(0)
    vm = Cnt(a, "vmcnt", 63)
    for j in range(16):
        a(f"s_add_u32 m0, s26, {j * 8192}")
        a(f"s_add_u32 s27, s25, {j * 2048}")
        a(f"buffer_load_dwordx4 v{vL16}, s[{SWS}:{SWS+3}], s27 offen lds"); vm.issue(("d", j // 4))
    BI, ACC, FA, FB, T = 8, 16, 32, 64, 96
    a(f"s_lshl_b32 s28, s{sTB}, 1"); a("s_add_u32 s28, s28, s23")
    a(f"s_lshl_b32 s29, s{sNB}, 1"); a("s_add_u32 s29, s29, s22")
    a("s_lshl_b32 s30, s28, 4"); a("s_add_u32 s30, s30, s29"); a("s_lshl_b32 s30, s30, 11"); a("s_lshl_b32 s31, s24, 10")
    a("s_add_u32 s30, s30, s31"); a(f"s_add_u32 s30, s30, {L.WS_B}")
    a(f"buffer_load_dwordx4 {v(BI, 4)}, v{vL16}, s[{SWS}:{SWS+3}], s30 offen"); vm.issue("b")
    vA, vBo, vR0, vR1, vOut = 4, 5, 6, 7, 12
    a("s_lshl_b32 s31, s24, 12"); a("s_lshl_b32 s32, s22, 10"); a("s_add_u32 s32, s32, s31"); a("s_add_u32 s32, s32, 2048")
    a(f"v_add_u32 v{vA}, s32, v{vL16}")
    a("s_lshl_b32 s32, s23, 10"); a("s_add_u32 s32, s32, s31"); a(f"v_add_u32 v{vBo}, s32, v{vL16}")
    a(f"s_and_b32 s31, s{sW}, 3"); a("s_lshl_b32 s31, s31, 12"); a(f"s_add_u32 s31, s31, {K3_RED}")
    a("s_lshl_b32 s32, s24, 11"); a("s_add_u32 s33, s31, s32"); a("s_xor_b32 s32, s32, 2048"); a("s_add_u32 s34, s31, s32")
    a(f"v_add_u32 v{vR0}, s33, v{vL16}"); a(f"v_add_u32 v{vR1}, s34, v{vL16}")
    a(f"v_and_b32 v{T}, 31, v{vLane}"); a(f"v_lshrrev_b32 v{T+1}, 5, v{vLane}"); a(f"v_lshlrev_b32 v{T+1}, 4, v{T+1}")
    a(f"v_lshl_add_u32 v{vOut}, v{T}, 10, v{T+1}")
    a("s_lshl_b32 s35, s28, 15"); a("s_lshl_b32 s36, s29, 6"); a("s_add_u32 s35, s35, s36"); a("s_lshl_b32 s36, s24, 5"); a("s_add_u32 s35, s35, s36")
    lg = Cnt(a, "lgkmcnt", 15)
    for g in range(4):
        vm.wait(("d", g)); a("s_barrier")
        st.stamp(1 + g)
        if g == 2:
            a(f"v_add_u32 v{vA}, 0x10000, v{vA}"); a(f"v_add_u32 v{vBo}, 0x10000, v{vBo}")
        for i in range(4):
            off = ((g & 1) * 4 + i) * 8192
            a(f"ds_read_b128 {v(FA + 4 * i + (g & 1) * 16, 4)}, v{vA} offset:{off}"); lg.issue((g, i))
            a(f"ds_read_b128 {v(FB + 4 * i + (g & 1) * 16, 4)}, v{vBo} offset:{off}"); lg.issue((g, i))
        for i in range(4):
            lg.wait((g, i))
            a(MF32(ACC, FA + 4 * i + (g & 1) * 16, FB + 4 * i + (g & 1) * 16, "0" if (g == 0 and i == 0) else None))
    a("s_nop 15")
    a("s_cmp_eq_u32 s24, 0"); a(f"s_cbranch_scc1 {N}_kh0")
    a(f"ds_write_b128 v{vR0}, {v(ACC, 4)}"); a(f"ds_write_b128 v{vR0}, {v(ACC + 4, 4)} offset:1024")
    a("s_nop 1")
    for r in range(8): a(f"v_mov_b32 v{ACC + r}, v{ACC + 8 + r}")
    a(f"s_branch {N}_khd")
    a.label(f"{N}_kh0")
    a(f"ds_write_b128 v{vR0}, {v(ACC + 8, 4)}"); a(f"ds_write_b128 v{vR0}, {v(ACC + 12, 4)} offset:1024")
    a.label(f"{N}_khd")
    a("s_waitcnt vmcnt(0)")
    for h in range(4):
        a(f"v_lshlrev_b32 v{T + 2*h}, 16, v{BI + h}"); a(f"v_and_b32 v{T + 2*h + 1}, 0xffff0000, v{BI + h}")
    for r in range(8): a(f"v_add_f32 v{ACC + r}, v{ACC + r}, v{T + r}")
    a("s_waitcnt lgkmcnt(0)"); a("s_barrier")
    a(f"ds_read_b128 {v(FA, 4)}, v{vR1}"); a(f"ds_read_b128 {v(FA + 4, 4)}, v{vR1} offset:1024")
    a("s_waitcnt lgkmcnt(0)")
    for r in range(8): a(f"v_add_f32 v{ACC + r}, v{ACC + r}, v{FA + r}")
    for h in range(4): a(f"v_cvt_pk_bf16_f32 v{T + h}, v{ACC + 2*h}, v{ACC + 2*h + 1}")
    a("s_nop 1")
    a(f"v_permlane32_swap_b32 v{T}, v{T + 2}"); a(f"v_permlane32_swap_b32 v{T + 1}, v{T + 3}")
    a(f"buffer_store_dwordx4 {v(T, 4)}, v{vOut}, s[{SO}:{SO+3}], s35 offen")
    st.stamp(5)
    st.flush(T + 8)
    a.label(f"{N}_end")
    a("s_endpgm")
    return a.text(), kd(N, 128), f"; @launch kernel={N} grid=(256,1,1) block=(512,1,1) lds={K3_LDS}"

def build(path):
    ks = [k1(), k2(), k3()]
    hdr = open("cdna_kernels/" + NAME + ".s.ref").read().split("\n")
    hdr = [l for l in hdr if l.startswith(";") and "@launch" not in l and "Override" not in l and "grid=ceil" not in l]
    out = "\n".join(hdr) + "\n" + "\n".join(k[2] for k in ks) + "\n"
    out += '.amdgcn_target "amdgcn-amd-amdhsa--gfx950"\n.text\n'
    out += "".join(k[0] for k in ks)
    out += '.section .rodata,"a"\n' + "".join(k[1] for k in ks)
    open(path, "w").write(out)

if __name__ == "__main__":
    if "--stamps" in sys.argv: STAMPS = True
    for x in sys.argv[2:]:
        if x.startswith("-D"):
            k_, _, v_ = x[2:].partition("="); OPT[k_] = int(v_) if v_ else 1
    if OPT.get("k1noload"): Cnt.lenient = True
    build(sys.argv[1])
```

```python
import sys, struct
from asmlib import *
import layout as L
import gen as G0
from gen import f32, LOG2E, MF16, MF32, Stamper, NAME

OPT = G0.OPT
ST = "sc1"
LD = "sc1"
class _LDD:
    def __format__(self, spec): return "sc1" if OPT.get("ldsc1") else ""
LDD = _LDD()
SLOT = 28672
K1_GATE = 5 * SLOT
K2_V = 65536
K2_RED = K2_V + 64 * 1040
LDS_BYTES = K2_RED + 16384
N = NAME + "_kernel"

SX, SWQ, SW1, SWS, SW2, SWO, SG, SDBG = 20, 24, 28, 32, 36, 40, 44, 80
SOUT = 44
sW, sMB, sNB, sI, sRot = 48, 49, 50, 51, 52
sE = 86
vL16 = 3
SPIN_MAX = 1 << 15

QF, KF, V0, V1, PA, PB = 8, 12, 16, 20, 24, 28
S = (32, 48); NM = 64; O = 80; GA = 96; RING = 112
vK, vL16b, vGq, vGt, vV, T = 5, 4, 176, 177, 178, 184
sHead, sQB, sGA, sGB, sCnt = 53, 54, 55, 56, 57
sKVsrc, sKVstep, sKVm0, sKVoff, sKVt = 58, 59, 60, 61, 62
sGq, sGt, sTT, sNT, sKH = 63, 64, 65, 66, 67

def spin(a, name, load, check, vmn):
    a(f"s_waitcnt vmcnt({vmn})")
    check()
    a(f"s_cbranch_scc1 {name}_ok")
    a(f"s_mov_b32 s79, {SPIN_MAX}")
    a.label(f"{name}_retry")
    a("s_sleep 2")
    load()
    a("s_waitcnt vmcnt(0)")
    check()
    a(f"s_cbranch_scc1 {name}_ok")
    a("s_sub_u32 s79, s79, 1"); a("s_cmp_lg_u32 s79, 0"); a(f"s_cbranch_scc1 {name}_retry")
    a.label(f"{name}_ok")

def flag_store(a, vtmp, soff):
    a(f"v_mov_b32 v{vtmp}, s{sE}"); a(f"v_mov_b32 v{vtmp+1}, s{sE+1}"); a(f"v_mov_b32 v{vtmp+2}, 0")
    a("s_mov_b64 exec, 1")
    a(f"buffer_store_dwordx2 v[{vtmp}:{vtmp+1}], v{vtmp+2}, s[{SWS}:{SWS+3}], s{soff} offen {ST}")
    a("s_mov_b64 exec, -1")

def head():
    a = Asm()
    a.raw(f".p2align 8\n.globl {N}\n.type {N},@function"); a.label(N)
    a("s_cmp_ge_u32 s2, 256"); a(f"s_cbranch_scc1 F_end")
    a("s_load_dwordx4 s[4:7], s[0:1], 0")
    a("s_load_dwordx2 s[8:9], s[0:1], 16")
    a("s_load_dwordx4 s[12:15], s[0:1], 32")
    a("s_load_dwordx4 s[16:19], s[0:1], 64")
    a("s_load_dwordx4 s[92:95], s[0:1], 48")
    a("v_lshrrev_b32 v1, 6, v0")
    a("v_and_b32 v2, 63, v0")
    a(f"v_readfirstlane_b32 s{sW}, v1")
    a("s_and_b32 s53, s2, 1"); a("s_lshl_b32 s53, s53, 3"); a("s_bfe_u32 s54, s2, 0x30003"); a(f"s_add_u32 s{sMB}, s53, s54")
    a("s_bfe_u32 s53, s2, 0x20001"); a("s_lshl_b32 s53, s53, 2"); a("s_lshr_b32 s54, s2, 6"); a(f"s_add_u32 s{sNB}, s53, s54")
    a(f"s_lshl_b32 s53, s{sNB}, 1"); a(f"s_add_u32 s53, s53, s{sMB}"); a(f"s_and_b32 s{sRot}, s53, 7")
    a(f"s_and_b32 s{sI}, s{sW}, 3")
    a(f"v_lshlrev_b32 v{vL16}, 4, v2")
    return a

def gemm_group(a, grp, st):
    vm = Cnt(a, "vmcnt", 63); lg = Cnt(a, "lgkmcnt", 15)
    sBase, sM, sT, sK, sBb, sMb = 55, 56, 57, 58, 59, 60
    vPe, vPo = 4, 5
    vPw = 4
    vB = 6 if grp == 0 else 7
    if grp == 0:
        a("v_lshrrev_b32 v16, 3, v2"); a("v_and_b32 v17, 7, v2"); a("v_lshrrev_b32 v18, 4, v2")
        a("v_xor_b32 v17, v17, v18"); a("v_lshlrev_b32 v17, 4, v17")
        a(f"v_lshl_add_u32 v{vPe}, v16, 10, v17"); a(f"v_xor_b32 v{vPo}, 64, v{vPe}")
        a(f"s_lshl_b32 s{sBase}, s{sMB}, 17"); a(f"s_lshl_b32 s61, s{sI}, 15"); a(f"s_add_u32 s{sBase}, s{sBase}, s61")
        a(f"s_lshl_b32 s{sM}, s{sI}, 12")
        a("s_waitcnt lgkmcnt(0)")
        srd(a, SX, 4, 2048 * 1024)
    else:
        for j in range(3):
            a(f"v_add_u32 v16, {64 * j}, v2")
            a("v_mul_u32_u24 v17, 5462, v16"); a("v_lshrrev_b32 v17, 16, v17")
            a("v_mul_u32_u24 v18, 12, v17"); a("v_sub_u32 v18, v16, v18")
            a("v_bfe_u32 v19, v17, 3, 1"); a("v_lshlrev_b32 v19, 1, v19"); a("v_xor_b32 v18, v18, v19")
            a("v_lshlrev_b32 v18, 4, v18"); a("v_mul_u32_u24 v17, 3072, v17"); a(f"v_add_u32 v{vPw + j}, v17, v18")
        a(f"s_mul_i32 s{sBase}, s{sI}, {16*3072}"); a(f"s_mul_i32 s61, s{sNB}, 192"); a(f"s_add_u32 s{sBase}, s{sBase}, s61")
        a(f"s_mul_i32 s{sM}, s{sI}, 3072")
        a("s_waitcnt lgkmcnt(0)")
        srd(a, SWQ, 6, 512 * 3072); srd(a, SG, 92, 1024)
    def dmaA(c):
        SB = (c % 5) * SLOT; out = []
        pre = [f"s_add_u32 s{sK}, s{sRot}, {c}", f"s_and_b32 s{sK}, s{sK}, 7"]
        if grp == 0:
            pre += [f"s_lshl_b32 s{sK}, s{sK}, 7", f"s_add_u32 s{sK}, s{sK}, s{sBase}"]
            for j in range(4):
                out.append((pre if j == 0 else []) + [f"s_add_u32 m0, s{sM}, {SB + j * 1024}", f"s_add_u32 s{sT}, s{sK}, {j * 8192}",
                    (f"buffer_load_dwordx4 v{vPo if j & 1 else vPe}, s[{SX}:{SX+3}], s{sT} offen lds", ("st", c))])
        else:
            pre += [f"s_mul_i32 s{sK}, s{sK}, {64 * 3072}", f"s_add_u32 s{sK}, s{sK}, s{sBase}"]
            for sg in range(3):
                out.append((pre if sg == 0 else []) + [f"s_add_u32 m0, s{sM}, {SB + 16384 + sg * 1024}", "s_nop 0",
                    (f"buffer_load_dwordx4 v{vPw + sg}, s[{SWQ}:{SWQ+3}], s{sK} offen lds", ("st", c))])
        return out
    def dmaB(c):
        SB = (c % 5) * SLOT; out = []
        pre = [f"s_add_u32 s{sK}, s62, {2 * (c - 8)}", f"s_and_b32 s{sK}, s{sK}, 7", f"s_mul_i32 s{sK}, s{sK}, {64 * 3584}", f"s_add_u32 s{sK}, s{sK}, s{sBb}"]
        js = range(4) if grp == 0 else range(4, 7)
        for n_, j in enumerate(js):
            out.append((pre if n_ == 0 else []) + [f"s_add_u32 m0, s{sMb}, {SB + j * 1024}", "s_nop 0",
                (f"buffer_load_dwordx4 v{vB + n_}, s[{SW1}:{SW1+3}], s{sK} offen lds", ("st", c))])
        return out
    def emit(group):
        for x in group:
            if isinstance(x, tuple): a(x[0]); vm.issue(x[1])
            elif callable(x): x()
            else: a(x)
    if grp == 1:
        a(f"s_mov_b32 m0, {K1_GATE}"); a("s_nop 0")
        a(f"buffer_load_dwordx4 v{vL16}, s[{SG}:{SG+3}], 0 offen lds"); vm.issue(("st", 0))
    for g_ in dmaA(0): emit(g_)
    for g_ in dmaA(1): emit(g_)
    srd(a, SWS, 18, L.WS_SIZE); srd(a, SW1, 12, 512 * 3584); srd(a, SDBG, 16, 256)
    st.stamp(0)
    if grp == 1:
        a(f"s_lshl_b32 s61, s2, 3"); a(f"s_add_u32 s61, s61, s{sW}"); a("s_cmp_lg_u32 s61, 7"); a("s_cbranch_scc1 F_noepoch")
        a("s_memrealtime s[62:63]"); a("v_mov_b32 v18, 0"); a("s_waitcnt lgkmcnt(0)")
        a("s_or_b32 s63, s63, 0x80000000")
        a("v_mov_b32 v16, s62"); a("v_mov_b32 v17, s63")
        a("s_mov_b64 exec, 1")
        a(f"buffer_store_dwordx2 v[16:17], v18, s[{SDBG}:{SDBG+3}], 0 offen sc0 sc1")
        a("s_mov_b64 exec, -1")
        a.label("F_noepoch")
    a(f"s_and_b32 s61, s{sI}, 1"); a(f"s_mul_i32 s{sBb}, s61, {32*3584}"); a(f"s_mul_i32 s61, s{sNB}, 224"); a(f"s_add_u32 s{sBb}, s{sBb}, s61")
    a(f"s_mul_i32 s{sMb}, s{sI}, 7168"); a(f"s_lshr_b32 s62, s{sI}, 1"); a(f"s_add_u32 s62, s62, s{sRot}")
    for n_, j in enumerate(range(4) if grp == 0 else range(4, 7)):
        a(f"v_add_u32 v16, {64 * j}, v2")
        a("v_mul_u32_u24 v17, 4682, v16"); a("v_lshrrev_b32 v17, 16, v17")
        a("v_mul_u32_u24 v18, 14, v17"); a("v_sub_u32 v18, v16, v18")
        a("v_lshrrev_b32 v19, 1, v18")
        a("v_bfe_u32 v20, v17, 3, 1"); a("v_lshlrev_b32 v20, 2, v20")
        a("v_cmp_ne_u32 vcc, 3, v19"); a("v_and_b32 v18, 1, v18"); a("v_lshlrev_b32 v18, 4, v18"); a("v_cndmask_b32 v20, 0, v20, vcc")
        a("v_xor_b32 v19, v19, v20"); a("v_lshl_add_u32 v18, v19, 5, v18")
        a("v_mul_u32_u24 v17, 3584, v17"); a(f"v_add_u32 v{vB + n_}, v17, v18")
    XF = 124; ACCA = 92; ACCB = 60; WF = 44; GF = 40
    vX0, vX1, vW0, vW1, vBa, vBb_, vG = 10, 11, 12, 13, 14, 15, 16
    cX0, cX1, cW0, cW1, cBa, cBb, cG = 17, 18, 19, 20, 21, 22, 23
    TMP = 26
    a("v_and_b32 v26, 15, v2"); a("v_lshrrev_b32 v27, 4, v2")
    a("v_lshrrev_b32 v28, 1, v26"); a("v_xor_b32 v28, v28, v27"); a("v_lshlrev_b32 v28, 4, v28")
    a(f"s_lshl_b32 s61, s{sI}, 12")
    a("v_lshl_add_u32 v28, v26, 7, v28"); a(f"v_add_u32 v{vX0}, s61, v28"); a(f"v_xor_b32 v{vX1}, 64, v{vX0}")
    a("v_lshrrev_b32 v28, 2, v26"); a("v_lshl_add_u32 v28, v27, 3, v28")
    a("v_and_b32 v29, 3, v26"); a("v_lshlrev_b32 v29, 3, v29")
    a("v_and_b32 v30, 1, v27")
    a("v_mul_u32_u24 v31, 192, v28"); a("v_add_u32 v31, v31, v29"); a("v_add_u32 v31, 16384, v31"); a("v_lshlrev_b32 v32, 5, v30")
    a(f"v_add_u32 v{vW0}, v31, v32"); a(f"v_sub_u32 v{vW1}, v31, v32")
    a("v_mul_u32_u24 v31, 224, v28"); a("v_add_u32 v31, v31, v29"); a("v_lshlrev_b32 v30, 7, v30")
    if grp == 0:
        a(f"v_add_u32 v{vBa}, v31, v30"); a(f"v_mov_b32 v{vBb_}, v31")
    else:
        a(f"v_sub_u32 v{vBa}, v31, v30")
        a(f"v_lshlrev_b32 v{vG}, 4, v27"); a(f"v_add_u32 v{vG}, {K1_GATE}, v{vG}")
    def setslot(sidx):
        SB = (sidx % 5) * SLOT
        if sidx < 8:
            for c_, b_ in ((cX0, vX0), (cX1, vX1), (cW0, vW0), (cW1, vW1)): a(f"v_add_u32 v{c_}, {SB}, v{b_}")
            if grp == 1:
                a(f"s_add_u32 s61, s{sRot}, {sidx}"); a("s_and_b32 s61, s61, 7"); a("s_lshl_b32 s61, s61, 7"); a(f"v_add_u32 v{cG}, s61, v{vG}")
        else:
            a(f"v_add_u32 v{cBa}, {SB}, v{vBa}")
            if grp == 0: a(f"v_add_u32 v{cBb}, {SB}, v{vBb_}")
    steps = [(c, ks) for c in range(8) for ks in range(2)] + [(c, ks) for c in range(8, 12) for ks in range(4)]
    tilesA = [0, 1, 2] if grp == 0 else [3, 4, 5]
    tilesB = [0, 1, 2, 3] if grp == 0 else [4, 5, 6]
    def xreg(kidx, tt): return XF + kidx * 8 + tt * 4
    def rdX(n):
        c, ks = steps[n]
        for tt in range(2):
            a(f"ds_read_b128 {v(xreg(n, tt), 4)}, v{cX1 if ks else cX0} offset:{tt * 2048}"); lg.issue(("X", n))
    def rdG(n):
        a(f"ds_read_b128 {v(GF, 4)}, v{cG} offset:{steps[n][1] * 64}"); lg.issue(("G", n))
    def rdW(n, q):
        c, ks = steps[n]
        for e in range(2):
            if c < 8:
                ct = tilesA[q]; ad = cW1 if ct & 1 else cW0; off = ks * 6144 + e * 768 + ct * 32
            else:
                ct = tilesB[q]; ad = cBb if ct == 3 else cBa; off = ks * 7168 + e * 896 + ct * 32
            a(f"ds_read_b64_tr_b16 {v(WF + q * 4 + e * 2, 2)}, v{ad} offset:{off}"); lg.issue(("W", n, q))
    def accA(q, tt): return ACCA + q * 8 + tt * 4
    def accB(q, tt): return ACCB + q * 8 + tt * 4
    def epiA():
        out = []
        out.append([f"s_lshl_b32 s64, s{sMB}, 2", f"s_add_u32 s64, s64, s{sI}", "s_lshl_b32 s65, s64, 10",
                    f"s_mul_i32 s63, s{sNB}, 6", f"s_mul_i32 s66, s{sNB}, {6 * 65536}", "s_add_u32 s65, s65, s66"])
        for q, ct in enumerate(tilesA):
            R = TMP + 2 + (q & 1) * 4
            out.append([f"s_cmp_lt_u32 s63, {32 - ct}", f"s_cselect_b32 s66, {f32(L.QSCALE)}, 1.0"] +
                       [f"v_mul_f32 v{accA(q, 0) + r}, s66, v{accA(q, 0) + r}" for r in range(8)])
            out.append([f"v_cvt_pk_bf16_f32 v{R + tt * 2 + h}, v{accA(q, tt) + 2 * h}, v{accA(q, tt) + 2 * h + 1}" for tt in range(2) for h in range(2)] +
                       [f"s_add_u32 s67, s65, {L.WS_Q + ct * 65536}", "s_nop 0", f"v_permlane16_swap_b32 v{R}, v{R + 2}", f"v_permlane16_swap_b32 v{R + 1}, v{R + 3}",
                       (f"buffer_store_dwordx4 {v(R, 4)}, v{vL16}, s[{SWS}:{SWS+3}], s67 offen {ST}", "sto")])
        if grp == 1:
            out.append(["v_and_b32 v36, 16, v2", "v_cmp_ne_u32 vcc, 0, v36", "v_and_b32 v37, 31, v2", "v_lshlrev_b32 v37, 2, v37",
                        f"v_cndmask_b32 v36, v{accA(3, 0)}, v{accA(3, 1)}, vcc", f"v_mul_f32 v36, {f32(-LOG2E)}, v36", "v_exp_f32 v36, v36"])
            out.append(["s_lshl_b32 s67, s64, 7", "v_add_f32 v36, 1.0, v36", "v_rcp_f32 v36, v36", f"s_add_u32 s67, s67, {L.WS_G}",
                        f"s_cmp_eq_u32 s{sNB}, 0", "s_cselect_b32 s67, s67, 0x04000000",
                        (f"buffer_store_dword v36, v37, s[{SWS}:{SWS+3}], s67 offen {ST}", "gsto")])
        return out
    TD = ACCA
    njob = 2 if grp == 1 else 1
    S_ = SW2 if grp == 1 else SWO
    def tjobs_touch():
        out = []
        pre = [f"s_lshl_b32 s68, s2, 2", f"s_add_u32 s68, s68, s{sI}"]
        pre += [f"s_mov_b32 s{S_}, s{14 if grp == 1 else 8}", f"s_and_b32 s{S_+1}, s{15 if grp == 1 else 9}, 0xffff",
                f"s_mov_b32 s{S_+2}, {1792 * 1024 if grp == 1 else 512 * 1024}", f"s_mov_b32 s{S_+3}, 0x20000"]
        pre += ["v_and_b32 v36, 31, v2", "v_lshlrev_b32 v36, 1, v36", "v_lshrrev_b32 v37, 5, v2", f"v_lshl_add_u32 v38, v37, {13 if grp == 1 else 12}, v36",
                "v_and_b32 v36, 15, v2", "v_lshlrev_b32 v39, 10, v36"]
        out.append(pre)
        for i in range(njob):
            g_ = []
            if grp == 0: g_ += ["s_and_b32 s69, s68, 511"]
            elif i == 0: g_ += ["s_mov_b32 s69, s68"]
            else: g_ += ["s_add_u32 s69, s68, 1024", "s_cmp_lt_u32 s68, 768", "s_cselect_b32 s69, s69, s68"]
            g_ += ["s_lshr_b32 s70, s69, 4", "s_and_b32 s71, s69, 15", "s_lshl_b32 s72, s70, 14", "s_lshl_b32 s73, s71, 6", f"s_add_u32 s{96 + 2*i}, s72, s73",
                   f"s_add_u32 s{97 + 2*i}, s{96 + 2*i}, {4096 if grp == 1 else 8192}",
                   f"s_mul_i32 s74, s71, {112 if grp == 1 else 32}", "s_add_u32 s74, s74, s70", "s_lshl_b32 s74, s74, 10",
                   f"s_add_u32 s{75 + i}, s74, {L.WS_W2 if grp == 1 else L.WS_WO}",
                   (f"buffer_load_dword v25, v39, s[{S_}:{S_+3}], s{96 + 2*i} offen", "pf")]
            out.append(g_)
        return out
    def tjobs_load():
        out = []
        for i in range(njob):
            for j in range(0, 8, 2):
                out.append([(f"buffer_load_ushort v{TD + 8*i + jj}, v38, s[{S_}:{S_+3}], s{96 + 2*i + (jj >= 4)} offen offset:{(jj & 3) * 1024}", "T") for jj in (j, j + 1)])
        return out
    def tjobs_store():
        vm.wait("T")
        for i in range(njob):
            for h in range(4): a(f"v_lshl_or_b32 v{TD + 16 + 4*i + h}, v{TD + 8*i + 2*h + 1}, 16, v{TD + 8*i + 2*h}")
            a(f"buffer_store_dwordx4 {v(TD + 16 + 4*i, 4)}, v{vL16}, s[{SWS}:{SWS+3}], s{75 + i} offen {ST}"); vm.issue("tsto")
    def ep_load(): a(f"buffer_load_dwordx2 v[24:25], v1, s[{SDBG}:{SDBG+3}], 0 offen sc0 sc1")
    def ep_check():
        a(f"v_readfirstlane_b32 s{sE}, v24"); a(f"v_readfirstlane_b32 s{sE+1}, v25"); a(f"s_cmp_lg_u32 s{sE+1}, 0")
    P1R = ACCA + 24
    def p1_setup():
        a("s_and_b32 s70, s2, 7"); a("s_lshl_b32 s70, s70, 2"); a("s_bfe_u32 s71, s2, 0x20003"); a("s_add_u32 s70, s70, s71")
        for k_, add in enumerate((32, 64, 0)):
            a(f"s_add_u32 s71, s70, {add}"); a("s_mul_i32 s71, s71, 21846"); a("s_lshr_b32 s71, s71, 16")
            a("s_lshl_b32 s71, s71, 9"); a(f"s_add_u32 s{72 + k_}, s71, {L.WS_F1}")
        a("s_lshr_b32 s71, s2, 5"); a("s_lshl_b32 s71, s71, 6"); a("s_add_u32 s74, s74, s71")
        a("v_lshlrev_b32 v36, 3, v2"); a("v_and_b32 v37, 63, v36")
    def p1_load():
        a(f"buffer_load_dwordx2 v[{P1R}:{P1R+1}], v36, s[{SWS}:{SWS+3}], s72 offen {LD}")
        a(f"buffer_load_dwordx2 v[{P1R+2}:{P1R+3}], v36, s[{SWS}:{SWS+3}], s73 offen {LD}")
        a(f"buffer_load_dwordx2 v[{P1R+4}:{P1R+5}], v37, s[{SWS}:{SWS+3}], s74 offen {LD}")
    def p1_check():
        a(f"v_cmp_eq_u64 vcc, s[{sE}:{sE+1}], v[{P1R}:{P1R+1}]")
        a(f"v_cmp_eq_u64 s[68:69], s[{sE}:{sE+1}], v[{P1R+2}:{P1R+3}]")
        a(f"v_cmp_eq_u64 s[70:71], s[{sE}:{sE+1}], v[{P1R+4}:{P1R+5}]")
        a("s_and_b64 s[68:69], s[68:69], vcc"); a("s_and_b64 s[68:69], s[68:69], s[70:71]"); a("s_cmp_eq_u64 s[68:69], exec")
    fill = []
    def filler(k=1):
        for _ in range(k):
            if fill: emit(fill.pop(0))
    a("v_mov_b32 v1, 0")
    vm.wait(("st", 0)); a("s_barrier")
    st.stamp(1)
    setslot(0)
    rdX(0)
    if grp == 1: rdG(0)
    for q in range(3): rdW(0, q)
    LEAD = 2
    fill += dmaA(2)
    for n, (c, ks) in enumerate(steps):
        isA = c < 8
        tiles = tilesA if isA else tilesB
        last_in_stage = (n + 1 == len(steps)) or steps[n + 1][0] != c
        nxt = n + 1 if n + 1 < len(steps) else None
        if last_in_stage and nxt is not None:
            if c + 1 <= 10:
                vm.wait(("st", c + 1 if c + 1 < 10 else 11))
                a("s_barrier")
            if c + 1 == 8: st.stamp(2)
            setslot(c + 1)
            nxs = [c + 1 + LEAD]
            if c + 1 + LEAD == 10: nxs = [10, 11]
            if c + 1 + LEAD == 11: nxs = []
            for nx in nxs:
                if nx <= 11: fill += (dmaA if nx < 8 else dmaB)(nx)
            if c + 1 == 5: fill += tjobs_touch()
            if c + 1 == 6: fill.append([ep_load, lambda: vm.issue("ep")])
        nA = nxt is not None and steps[nxt][0] < 8
        if nA: rdX(nxt)
        first = (n == 0) or (n == 16)
        kidx = n if isA else n - 16
        if isA: lg.wait(("X", n))
        if isA and grp == 1:
            lg.wait(("G", n))
            for tt in range(2): a(MF16(accA(3, tt), GF, xreg(kidx, tt), "0" if first else None))
            if nA: rdG(nxt)
            filler()
        for q, ct in enumerate(tiles):
            lg.wait(("W", n, q))
            for tt in range(2):
                ac = accA(q, tt) if isA else accB(q, tt)
                a(MF16(ac, WF + q * 4, xreg(kidx, tt), "0" if first else None))
            if nxt is not None: rdW(nxt, q)
            filler()
        if n == 15:
            if grp == 0: rdW(16, 3)
            fill[0:0] = epiA()
        if n == 20:
            while fill: filler()
            idx = len(vm.q) - 1 - max(i for i, t in enumerate(vm.q) if t == "ep") if "ep" in vm.q else 63
            spin(a, f"F_ep{grp}", ep_load, ep_check, min(idx, 63))
            vm.wait("sto")
            a(f"s_lshl_b32 s67, s{sNB}, 1"); a(f"s_add_u32 s67, s67, {grp}"); a("s_lshl_b32 s67, s67, 6"); a("s_add_u32 s67, s67, s64")
            a("s_lshl_b32 s67, s67, 3"); a(f"s_add_u32 s67, s67, {L.WS_F1}")
            flag_store(a, 26, 67)
            st.stamp(3)
            fill += tjobs_load()
        if n == 27:
            while fill: filler()
            tjobs_store()
            if grp == 1: p1_setup()
        if n == 29 and grp == 1:
            p1_load(); vm.issue("p1"); vm.issue("p1"); vm.issue("p1")
    if grp == 1: spin(a, "F_p1", p1_load, p1_check, 0); vm.q = []
    st.stamp(4)
    a("s_barrier")
    a(f"s_mul_i32 s68, s64, 112"); a(f"s_mul_i32 s69, s{sNB}, 7"); a("s_add_u32 s68, s68, s69"); a("s_lshl_b32 s68, s68, 10")
    a(f"s_add_u32 s68, s68, {L.WS_H}")
    attn_setup(a, vm)
    a(f"s_mov_b32 s69, {f32(-LOG2E)}")
    for q, ct in enumerate(tilesB):
        R = 216 + (q & 1) * 4
        T_ = 200 + (q & 1) * 8
        A0 = accB(q, 0)
        for r in range(8): a(f"v_mul_f32 v{T_ + r}, s69, v{A0 + r}")
        for r in range(8): a(f"v_exp_f32 v{T_ + r}, v{T_ + r}")
        for r in range(8): a(f"v_add_f32 v{T_ + r}, 1.0, v{T_ + r}")
        for r in range(8): a(f"v_rcp_f32 v{T_ + r}, v{T_ + r}")
        for r in range(8): a(f"v_mul_f32 v{T_ + r}, v{A0 + r}, v{T_ + r}")
        for h in range(4): a(f"v_cvt_pk_bf16_f32 v{R + h}, v{T_ + 2 * h}, v{T_ + 2 * h + 1}")
        a(f"s_add_u32 s70, s68, {ct * 1024}")
        a("s_nop 0")
        a(f"v_permlane16_swap_b32 v{R}, v{R + 2}"); a(f"v_permlane16_swap_b32 v{R + 1}, v{R + 3}")
        a(f"buffer_store_dwordx4 {v(R, 4)}, v{vL16}, s[{SWS}:{SWS+3}], s70 offen {ST}"); vm.issue("H")
    for r in range(16): a(f"v_mov_b32 v{GA + r}, 0")
    a("s_waitcnt lgkmcnt(0)")
    vm.wait(("kv", 0))
    if grp == 0: a("s_branch F_attn")

def kvdma(a, vm, j):
    a(f"s_mov_b32 m0, s{sKVm0}")
    a(f"s_add_u32 s{sKVt}, s{sKVsrc}, {j * 4096}")
    a(f"buffer_load_dwordx4 v{vL16}, s[{SWS}:{SWS+3}], s{sKVt} offen {LDD} lds"); vm.issue(("kv", j))
    a(f"s_add_u32 s{sKVm0}, s{sKVm0}, s{sKVstep}")

def attn_setup(a, vm):
    vLane = 2
    a("s_and_b32 s70, s2, 7"); a("s_lshl_b32 s70, s70, 2"); a("s_bfe_u32 s71, s2, 0x20003"); a(f"s_add_u32 s{sHead}, s70, s71")
    a(f"s_lshr_b32 s{sQB}, s2, 5")
    a(f"s_lshl_b32 s70, s{sHead}, 6"); a(f"s_lshl_b32 s71, s{sQB}, 3"); a("s_add_u32 s70, s70, s71"); a(f"s_add_u32 s70, s70, s{sW}")
    a("s_lshl_b32 s70, s70, 10")
    a(f"buffer_load_dwordx4 {v(QF, 4)}, v{vL16}, s[{SWS}:{SWS+3}], s70 offen {LDD}"); vm.issue("Q")
    a(f"s_and_b32 s70, s{sW}, 1"); a(f"s_lshr_b32 s71, s{sW}, 1")
    a(f"s_mul_i32 s{sKVsrc}, s70, {L.WS_V - L.WS_K}"); a(f"s_lshl_b32 s72, s{sHead}, 16"); a(f"s_add_u32 s{sKVsrc}, s{sKVsrc}, s72")
    a("s_lshl_b32 s72, s71, 10"); a(f"s_add_u32 s{sKVsrc}, s{sKVsrc}, s72"); a(f"s_add_u32 s{sKVsrc}, s{sKVsrc}, {L.WS_K}")
    a(f"s_lshl_b32 s{sKVstep}, s70, 4"); a(f"s_add_u32 s{sKVstep}, s{sKVstep}, 1024")
    a(f"s_mul_i32 s{sKVm0}, s{sKVstep}, s71"); a(f"s_mul_i32 s72, s70, {K2_V}"); a(f"s_add_u32 s{sKVm0}, s{sKVm0}, s72")
    a(f"s_lshl_b32 s{sKVstep}, s{sKVstep}, 2")
    kvdma(a, vm, 0); kvdma(a, vm, 1)
    a(f"s_bfe_u32 s71, s{sW}, 0x10001"); a(f"s_lshl_b32 s{sTT}, s{sHead}, 1"); a(f"s_add_u32 s{sTT}, s{sTT}, s71")
    a(f"s_and_b32 s71, s{sW}, 1"); a(f"s_lshl_b32 s{sNT}, s{sQB}, 1"); a(f"s_add_u32 s{sNT}, s{sNT}, s71")
    a(f"s_lshr_b32 s{sKH}, s{sW}, 2")
    a(f"s_lshl_b32 s{sGt}, s{sTT}, 7"); a(f"s_add_u32 s{sGt}, s{sGt}, {L.WS_G}")
    a(f"s_lshl_b32 s{sGq}, s{sQB}, 3"); a(f"s_add_u32 s{sGq}, s{sGq}, s{sW}"); a(f"s_lshl_b32 s{sGq}, s{sGq}, 7"); a(f"s_add_u32 s{sGq}, s{sGq}, {L.WS_G}")
    a(f"s_mul_i32 s71, s{sKH}, 56")
    a(f"s_mul_i32 s72, s{sTT}, 112"); a("s_add_u32 s72, s72, s71"); a("s_lshl_b32 s72, s72, 10"); a(f"s_add_u32 s{sGB}, s72, {L.WS_H}")
    a(f"s_mul_i32 s72, s{sNT}, 112"); a("s_add_u32 s72, s72, s71"); a("s_lshl_b32 s72, s72, 10"); a(f"s_add_u32 s{sGA}, s72, {L.WS_W2}")
    a(f"v_add_u32 v{vL16b}, 4096, v{vL16}")
    a(f"v_mov_b32 v{vK}, v{vL16}")
    a(f"v_bfe_u32 v{T}, v{vLane}, 1, 1"); a(f"v_lshlrev_b32 v{T+4}, 3, v{T}"); a(f"v_add_u32 v{T+4}, {K2_V + 1024}, v{T+4}")
    a(f"v_lshlrev_b32 v{T}, 9, v{T}")
    a(f"v_bfe_u32 v{T+1}, v{vLane}, 2, 2"); a(f"v_lshl_add_u32 v{T}, v{T+1}, 4, v{T}")
    a(f"v_lshrrev_b32 v{T+1}, 5, v{vLane}"); a(f"v_lshl_add_u32 v{T}, v{T+1}, 6, v{T}")
    a(f"v_and_b32 v{T+1}, 1, v{vLane}"); a(f"v_lshl_add_u32 v{T}, v{T+1}, 3, v{T}")
    a(f"v_and_b32 v{T+1}, 16, v{vLane}"); a(f"v_cmp_eq_u32 vcc, 0, v{T+1}")
    for q in range(4): a(f"v_add_u32 v{T+5+q}, {K2_V + q * 128}, v{T}")
    for q in range(4): a(f"v_cndmask_b32 v{vV + q}, v{T+4}, v{T+5+q}, vcc")
    a(f"v_mul_u32_u24 v{T}, 1040, v{vLane}"); a(f"v_add_u32 v{T}, {K2_V + 1024}, v{T}")
    a(f"v_mov_b32 v{T + 4}, 0x3f80")
    for r in range(1, 4): a(f"v_mov_b32 v{T + 4 + r}, 0")
    a(f"ds_write_b128 v{T}, {v(T + 4, 4)}")

def attn(a, st):
    vLane = 2
    vm = Cnt(a, "vmcnt", 63)
    vm.issue(("kv", 1)); vm.issue("H"); vm.issue("H"); vm.issue("H")
    a.label("F_attn")
    a("s_barrier")
    st.stamp(5)
    def rdV(t, off):
        R = V1 if t else V0
        for jj in range(2): a(f"ds_read_b64_tr_b16 {v(R + 2 * jj, 2)}, v{vV + 2 * t + jj} offset:{off}")
    def gload(sidx, cnt=None):
        vo = vL16b if sidx >= 4 else vL16
        a(f"buffer_load_dwordx4 {v(RING + 8 * sidx, 4)}, v{vo}, s[{SWS}:{SWS+3}], s{sGA} offen offset:{(sidx & 3) * 1024} {LDD}")
        a(f"buffer_load_dwordx4 {v(RING + 8 * sidx + 4, 4)}, v{vo}, s[{SWS}:{SWS+3}], s{sGB} offen offset:{(sidx & 3) * 1024} {LDD}")
        if cnt: cnt.issue(("G", sidx)); cnt.issue(("G", sidx))
    def gadv(): a(f"s_add_u32 s{sGA}, s{sGA}, 8192"); a(f"s_add_u32 s{sGB}, s{sGB}, 8192")
    a(f"ds_read_b128 {v(KF, 4)}, v{vK}")
    rdV(0, 0); rdV(1, 0)
    a("s_waitcnt lgkmcnt(4)")
    a(MF32(S[1], KF, QF, "0"))
    a("s_nop 15")
    def maxtree(Sb, dst, first):
        if first:
            a(f"v_max3_f32 v{dst}, v{Sb}, v{Sb+1}, v{Sb+2}"); a(f"v_max_f32 v{dst}, v{dst}, v{Sb+3}"); r0 = 4
        else: r0 = 0
        for r in range(r0, 16, 2): a(f"v_max3_f32 v{dst}, v{dst}, v{Sb+r}, v{Sb+r+1}")
    def finish_max(dst):
        a(f"v_mov_b32 v{dst+1}, v{dst}"); a("s_nop 1")
        a(f"v_permlane32_swap_b32 v{dst}, v{dst+1}"); a("s_nop 0")
        a(f"v_max_f32 v{dst}, v{dst}, v{dst+1}")
        for r in range(16): a(f"v_sub_f32 v{NM + r}, 0, v{dst}")
        a("s_nop 1")
    maxtree(S[1], T, True); finish_max(T)
    a(MF32(S[0], KF, QF, v(NM, 16)))
    a(f"ds_read_b128 {v(KF, 4)}, v{vK} offset:1024")
    a("s_nop 10")
    def E(Sb, r): a(f"v_exp_f32 v{Sb + r}, v{Sb + r}")
    def C(P, Sb, h): a(f"v_cvt_pk_bf16_f32 v{P + h}, v{Sb + 2*h}, v{Sb + 2*h + 1}")
    PX = OPT.get("px", 0)
    lab = [0]
    def prio(p):
        lab[0] += 1
        a(f"s_cbranch_vccz F_pr{lab[0]}"); a(f"s_setprio {p}"); a.label(f"F_pr{lab[0]}")
    def tile(t, first=False, pre=None, h1=None, h2=None, g=None, pr=False):
        Sc = S[t & 1]; Sn = S[(t + 1) & 1]
        if pr and PX and t == 0: prio(1)
        if pr and PX and t == PX: prio(0)
        E(Sc, 0); E(Sc, 1)
        if not first:
            a("s_waitcnt lgkmcnt(3)")
            a(MF32(O, V1, PB))
            rdV(1, t * 1040)
        for r in range(2, 6): E(Sc, r)
        if pre: pre()
        a("s_waitcnt lgkmcnt(4)" if not first else "s_waitcnt lgkmcnt(0)")
        a(MF32(Sn, KF, QF, v(NM, 16)))
        a(f"ds_read_b128 {v(KF, 4)}, v{vK} offset:{(t + 2) * 1024}")
        if h1: h1()
        E(Sc, 6); E(Sc, 7)
        for h in range(4): C(PA, Sc, h)
        if h2: h2()
        E(Sc, 8); E(Sc, 9)
        a("s_waitcnt lgkmcnt(3)")
        a(MF32(O, V0, PA, "0" if first else None))
        rdV(0, (t + 1) * 1040)
        for r in range(10, 14): E(Sc, r)
        if g: g()
        E(Sc, 14); E(Sc, 15)
        for h in range(4): C(PB, Sc + 8, h)
    def adv():
        a(f"v_add_u32 v{vK}, 8192, v{vK}")
        for q in range(4): a(f"v_add_u32 v{vV + q}, 8320, v{vV + q}")
    def bar(tag, extra=None):
        def f():
            vm.wait(tag); a("s_barrier")
            if extra: extra()
        return f
    def p2_publish():
        a(f"s_cmp_lg_u32 s{sW}, 0"); a("s_cbranch_scc1 F_nop2")
        a("s_lshl_b32 s70, s2, 3"); a(f"s_add_u32 s70, s70, {L.WS_F2}")
        flag_store(a, T, 70)
        a.label("F_nop2")
    for t in range(8):
        pre = None
        if t == 2: pre = bar(("kv", 1))
        if t == 5: pre = bar(("kv", 5), p2_publish)
        tile(t, t == 0, pre,
             (lambda t=t: kvdma(a, vm, 2 * t + 2)) if t < 7 else None,
             (lambda t=t: kvdma(a, vm, 2 * t + 3)) if t < 7 else None)
    st.stamp(6)
    adv()
    def p2_load():
        a(f"buffer_load_dwordx4 {v(RING, 4)}, v{T+10}, s[{SWS}:{SWS+3}], s71 offen {LD}")
        a(f"buffer_load_dwordx4 {v(RING + 4, 4)}, v{T+10}, s[{SWS}:{SWS+3}], s71 offen offset:16 {LD}")
    def p2_check():
        a(f"v_cmp_eq_u64 vcc, s[{sE}:{sE+1}], v[{RING}:{RING+1}]")
        a(f"v_cmp_eq_u64 s[72:73], s[{sE}:{sE+1}], v[{RING+2}:{RING+3}]")
        a(f"v_cmp_eq_u64 s[74:75], s[{sE}:{sE+1}], v[{RING+4}:{RING+5}]")
        a(f"v_cmp_eq_u64 s[76:77], s[{sE}:{sE+1}], v[{RING+6}:{RING+7}]")
        a("s_and_b64 s[72:73], s[72:73], vcc"); a("s_and_b64 s[74:75], s[74:75], s[76:77]"); a("s_and_b64 s[72:73], s[72:73], s[74:75]")
        a("s_cmp_eq_u64 s[72:73], exec")
    def p2_first():
        a(f"v_lshlrev_b32 v{T+10}, 5, v{vLane}"); a(f"s_mov_b32 s71, {L.WS_F2}"); p2_load()
    for t in range(8):
        tile(t, g=p2_first if t == 5 else None)
    spin(a, "F_p2", p2_load, p2_check, 0)
    a("s_barrier")
    st.stamp(7)
    adv()
    def gates():
        a(f"v_and_b32 v{T}, 31, v{vLane}"); a(f"v_lshlrev_b32 v{T}, 2, v{T}")
        a(f"buffer_load_dword v{vGq}, v{T}, s[{SWS}:{SWS+3}], s{sGq} offen {LDD}")
        a(f"buffer_load_dword v{vGt}, v{T}, s[{SWS}:{SWS+3}], s{sGt} offen {LDD}")
    a(f"s_cmp_ge_u32 s{sW}, 4"); a("s_cselect_b64 vcc, -1, 0")
    for t in range(8):
        tile(t, h1=gates if t == 0 else None, g=lambda t=t: gload(t), pr=True)
    gadv()
    a(f"s_mov_b32 s{sCnt}, 5")
    a.raw(".p2align 6")
    a.label("F_loop")
    adv()
    def gstep(t):
        a("s_waitcnt vmcnt(14)")
        a(MF32(GA, RING + 8 * t, RING + 8 * t + 4))
        gload(t)
    for t in range(8): tile(t, g=lambda t=t: gstep(t), pr=True)
    gadv()
    a(f"s_sub_u32 s{sCnt}, s{sCnt}, 1"); a(f"s_cmp_lg_u32 s{sCnt}, 0"); a("s_cbranch_scc1 F_loop")
    a("s_waitcnt lgkmcnt(0)")
    a(MF32(O, V1, PB))
    a("s_setprio 0")
    st.stamp(8)
    vm = Cnt(a, "vmcnt", 63)
    for t in range(8): vm.issue(("G", t)); vm.issue(("G", t))
    a(f"s_lshl_b32 s70, s{sQB}, 3"); a(f"s_add_u32 s70, s70, s{sW}"); a("s_lshl_b32 s70, s70, 5"); a(f"s_add_u32 s70, s70, s{sHead}")
    a("s_lshl_b32 s71, s70, 3"); a(f"s_add_u32 s71, s71, {L.WS_F3}")
    a("s_lshl_b32 s70, s70, 10"); a(f"s_add_u32 s70, s70, {L.WS_O}")
    a(f"v_mov_b32 v{T+3}, 0x5f800000"); a(f"v_mov_b32 v{T+4}, 0x7e800000")
    a("s_nop 3")
    a(f"v_add_f32 v{T+2}, |v{O}|, |v{O+1}|")
    for r in range(2, 8): a(f"v_add_f32 v{T+2}, v{T+2}, |v{O+r}|")
    a(f"v_cmp_lt_f32 vcc, v{O+8}, v{T+3}"); a(f"v_cmp_lt_f32 s[72:73], v{T+2}, v{T+4}")
    a("s_and_b64 s[72:73], s[72:73], vcc"); a("s_cmp_eq_u64 s[72:73], exec")
    a("s_cbranch_scc0 F_slow")
    a.label("F_fin")
    a(f"v_rcp_f32 v{T+2}, v{O+8}"); a("s_nop 0")
    a(f"v_mul_f32 v{T+2}, v{T+2}, v{vGq}")
    for r in range(8): a(f"v_mul_f32 v{O + r}, v{O + r}, v{T+2}")
    for h in range(4): a(f"v_cvt_pk_bf16_f32 v{PA + h}, v{O + 2*h}, v{O + 2*h + 1}")
    a(f"buffer_store_dwordx4 {v(PA, 4)}, v{vL16}, s[{SWS}:{SWS+3}], s70 offen {ST}"); vm.issue("O")
    PUB = OPT.get("pub", 3)
    for t in range(8):
        vm.wait(("G", t))
        a(MF32(GA, RING + 8 * t, RING + 8 * t + 4))
        gload(t, vm)
        if t == PUB:
            vm.wait("O"); flag_store(a, T, 71); st.stamp(9)
    a(f"s_lshl_b32 s72, s{sKH}, 4")
    a(f"s_lshl_b32 s73, s{sNT}, 5"); a("s_add_u32 s73, s73, s72"); a("s_lshl_b32 s73, s73, 10"); a(f"s_add_u32 s{sGA}, s73, {L.WS_WO}")
    a(f"s_lshl_b32 s73, s{sTT}, 5"); a("s_add_u32 s73, s73, s72"); a("s_lshl_b32 s74, s73, 3"); a(f"s_add_u32 s74, s74, {L.WS_F3}")
    a("s_lshl_b32 s73, s73, 10"); a(f"s_add_u32 s{sGB}, s73, {L.WS_O}")
    a(f"s_add_u32 s75, s{sGA}, 8192"); a(f"s_add_u32 s76, s{sGB}, 8192")
    a(f"v_and_b32 v{T+10}, 15, v{vLane}"); a(f"v_lshlrev_b32 v{T+10}, 3, v{T+10}")
    def p3_load(): a(f"buffer_load_dwordx2 v[{T+8}:{T+9}], v{T+10}, s[{SWS}:{SWS+3}], s74 offen {LD}")
    def p3_check():
        a(f"v_cmp_eq_u64 vcc, s[{sE}:{sE+1}], v[{T+8}:{T+9}]"); a("s_cmp_eq_u64 vcc, exec")
    def frag_load(dst, k, sa, sb, tag):
        vo = vL16b if (k & 7) >= 4 else vL16
        a(f"buffer_load_dwordx4 {v(dst, 4)}, v{vo}, s[{SWS}:{SWS+3}], s{sb if k >= 8 else sa} offen offset:{(k & 3) * 1024} {LDD}"); vm.issue(tag)
    for t in range(8):
        vm.wait(("G", t))
        a(MF32(GA, RING + 8 * t, RING + 8 * t + 4))
        for k in (2 * t, 2 * t + 1): frag_load(RING + 4 * k, k, sGA, 75, ("W", k))
    p3_load()
    a(f"v_sub_f32 v{vGt}, 1.0, v{vGt}")
    a(f"s_and_b32 s72, s{sW}, 3"); a("s_lshl_b32 s72, s72, 12"); a(f"s_add_u32 s72, s72, {K2_RED}")
    a(f"s_lshl_b32 s73, s{sKH}, 11"); a("s_add_u32 s77, s72, s73"); a("s_xor_b32 s73, s73, 2048"); a("s_add_u32 s78, s72, s73")
    a(f"v_add_u32 v{T}, s77, v{vL16}"); a(f"v_add_u32 v{T+1}, s78, v{vL16}")
    a(f"v_and_b32 v{T+2}, 31, v{vLane}"); a(f"v_lshrrev_b32 v{T+3}, 5, v{vLane}"); a(f"v_lshlrev_b32 v{T+3}, 4, v{T+3}")
    a(f"v_lshl_add_u32 v{T+2}, v{T+2}, 10, v{T+3}")
    a(f"s_lshl_b32 s77, s{sTT}, 15"); a(f"s_lshl_b32 s78, s{sNT}, 6"); a("s_add_u32 s77, s77, s78"); a(f"s_lshl_b32 s78, s{sKH}, 5"); a("s_add_u32 s77, s77, s78")
    srd(a, SOUT, 94, 2048 * 1024)
    for r in range(16): a(f"v_mul_f32 v{GA + r}, v{GA + r}, v{vGt}")
    st.stamp(10)
    spin(a, "F_p3", p3_load, p3_check, 0); vm.q = []
    st.stamp(11)
    for k in range(16): frag_load(32 + 4 * k, k, sGB, 76, ("B", k))
    for k in range(16):
        vm.wait(("B", k))
        a(MF32(GA, RING + 4 * k, 32 + 4 * k))
    st.stamp(12)
    a("s_nop 15")
    a(f"s_cmp_eq_u32 s{sKH}, 0"); a("s_cbranch_scc1 F_kh0")
    a(f"ds_write_b128 v{T}, {v(GA, 4)}"); a(f"ds_write_b128 v{T}, {v(GA + 4, 4)} offset:1024")
    a("s_nop 1")
    for r in range(8): a(f"v_mov_b32 v{GA + r}, v{GA + 8 + r}")
    a("s_branch F_khd")
    a.label("F_kh0")
    a(f"ds_write_b128 v{T}, {v(GA + 8, 4)}"); a(f"ds_write_b128 v{T}, {v(GA + 12, 4)} offset:1024")
    a.label("F_khd")
    a("s_waitcnt lgkmcnt(0)"); a("s_barrier")
    a(f"ds_read_b128 {v(32, 4)}, v{T+1}"); a(f"ds_read_b128 {v(36, 4)}, v{T+1} offset:1024")
    a("s_waitcnt lgkmcnt(0)")
    for r in range(8): a(f"v_add_f32 v{GA + r}, v{GA + r}, v{32 + r}")
    for h in range(4): a(f"v_cvt_pk_bf16_f32 v{40 + h}, v{GA + 2*h}, v{GA + 2*h + 1}")
    a("s_nop 1")
    a("v_permlane32_swap_b32 v40, v42"); a("v_permlane32_swap_b32 v41, v43")
    a(f"buffer_store_dwordx4 v[40:43], v{T+2}, s[{SOUT}:{SOUT+3}], s77 offen")
    st.stamp(13)
    st.flush(T + 8)
    a.label("F_end")
    a("s_endpgm")
    a.label("F_slow")
    M = T + 6
    a(f"v_mov_b32 v{vK}, v{vL16}")
    a(f"v_mov_b32 v{M}, 0xff800000")
    a(f"s_mov_b32 s{sCnt}, 64")
    a.label("F_slow1")
    a(f"ds_read_b128 {v(KF, 4)}, v{vK}"); a(f"v_add_u32 v{vK}, 1024, v{vK}")
    a("s_waitcnt lgkmcnt(0)")
    a(MF32(S[1], KF, QF, "0")); a("s_nop 15")
    maxtree(S[1], M, False)
    a(f"s_sub_u32 s{sCnt}, s{sCnt}, 1"); a(f"s_cmp_lg_u32 s{sCnt}, 0"); a("s_cbranch_scc1 F_slow1")
    finish_max(M)
    a(f"v_mov_b32 v{vK}, v{vL16}")
    for q in range(4): a(f"v_subrev_u32 v{vV + q}, {7 * 8320}, v{vV + q}")
    for r in range(16): a(f"v_mov_b32 v{O + r}, 0")
    a(f"s_mov_b32 s{sCnt}, 64")
    a.label("F_slow2")
    a(f"ds_read_b128 {v(KF, 4)}, v{vK}"); rdV(0, 0); rdV(1, 0)
    a(f"v_add_u32 v{vK}, 1024, v{vK}")
    for q in range(4): a(f"v_add_u32 v{vV + q}, 1040, v{vV + q}")
    a("s_waitcnt lgkmcnt(0)")
    a(MF32(S[0], KF, QF, v(NM, 16))); a("s_nop 15")
    for r in range(16): E(S[0], r)
    a("s_nop 0")
    for h in range(4): C(PA, S[0], h)
    for h in range(4): C(PB, S[0] + 8, h)
    a("s_nop 1")
    a(MF32(O, V0, PA)); a(MF32(O, V1, PB))
    a(f"s_sub_u32 s{sCnt}, s{sCnt}, 1"); a(f"s_cmp_lg_u32 s{sCnt}, 0"); a("s_cbranch_scc1 F_slow2")
    a("s_nop 15")
    a("s_branch F_fin")

def build(path):
    a = head()
    st = Stamper(a, 0, 255, SWS, sW); st.init()
    a(f"s_cmp_ge_u32 s{sW}, 4"); a("s_cbranch_scc1 F_g1")
    gemm_group(a, 0, st)
    a.label("F_g1")
    gemm_group(a, 1, st)
    attn(a, st)
    hdr = open("cdna_kernels/" + NAME + ".s.ref").read().split("\n")
    hdr = [l for l in hdr if l.startswith(";") and "@launch" not in l and "Override" not in l and "grid=ceil" not in l]
    out = "\n".join(hdr) + f"\n; @launch grid=(256,1,1) block=(512,1,1) lds={LDS_BYTES}\n"
    out += '.amdgcn_target "amdgcn-amd-amdhsa--gfx950"\n.text\n' + a.text()
    out += '.section .rodata,"a"\n' + kd(N, 256, 102)
    open(path, "w").write(out)

if __name__ == "__main__":
    if "--stamps" in sys.argv: G0.STAMPS = True
    for x in sys.argv[2:]:
        if x.startswith("-D"):
            k_, _, v_ = x[2:].partition("="); OPT[k_] = int(v_) if v_ else 1
    build(sys.argv[1])
```

```python
import sys
def kernel(name, bodyA, bodyB, itA, itB, wavesA, vgpr=128, acc=None):
    s = f""".p2align 8
.globl {name}
.type {name},@function
{name}:
  s_load_dwordx2 s[4:5], s[0:1], 0
  v_lshrrev_b32 v1, 6, v0
  s_nop 1
  v_readfirstlane_b32 s6, v1
  v_mov_b32 v2, 0
"""
    for r in range(8, min(vgpr, acc if acc else vgpr)):
        s += f"  v_mov_b32 v{r}, 0.5\n"
    s += f"""  s_waitcnt lgkmcnt(0)
  s_mov_b32 s8, s4
  s_mov_b32 s9, s5
  s_mov_b32 s10, 0x100000
  s_mov_b32 s11, 0x20000
  s_barrier
  s_memtime s[12:13]
  s_waitcnt lgkmcnt(0)
  s_cmp_ge_u32 s6, {wavesA}
  s_cbranch_scc1 {name}_B
  s_mov_b32 s7, {itA}
.p2align 6
{name}_LA:
{bodyA}
  s_sub_u32 s7, s7, 1
  s_cmp_lg_u32 s7, 0
  s_cbranch_scc1 {name}_LA
  s_branch {name}_end
{name}_B:
  s_mov_b32 s7, {itB}
  s_cmp_eq_u32 s7, 0
  s_cbranch_scc1 {name}_end
.p2align 6
{name}_LB:
{bodyB}
  s_sub_u32 s7, s7, 1
  s_cmp_lg_u32 s7, 0
  s_cbranch_scc1 {name}_LB
{name}_end:
  s_memtime s[14:15]
  s_waitcnt lgkmcnt(0)
  s_sub_u32 s14, s14, s12
  s_lshl_b32 s16, s2, 6
  s_lshl_b32 s17, s6, 2
  s_add_u32 s16, s16, s17
  v_mov_b32 v2, s16
  v_mov_b32 v3, s14
  v_and_b32 v4, 63, v0
  v_cmp_eq_u32 vcc, 0, v4
  s_and_saveexec_b64 s[18:19], vcc
  buffer_store_dword v3, v2, s[8:11], 0 offen
  s_endpgm
"""
    kd = f""".amdhsa_kernel {name}
  .amdhsa_next_free_vgpr {vgpr}
  .amdhsa_next_free_sgpr 32
  .amdhsa_accum_offset {acc if acc else vgpr}
  .amdhsa_group_segment_fixed_size 0
  .amdhsa_kernarg_size 16
  .amdhsa_user_sgpr_count 2
  .amdhsa_user_sgpr_kernarg_segment_ptr 1
  .amdhsa_system_sgpr_workgroup_id_x 1
.end_amdhsa_kernel
"""
    return s, kd

def emit(fname, kernels, runs):
    out = ""
    for r in runs: out += "; @mb " + " ".join(map(str, r)) + "\n"
    out += '.amdgcn_target "amdgcn-amd-amdhsa--gfx950"\n.text\n'
    for s, kd in kernels: out += s
    out += '.section .rodata,"a"\n'
    for s, kd in kernels: out += ".p2align 6\n" + kd
    open(fname, "w").write(out)

if __name__ == "__main__":
    exp = "\n".join(f"  v_exp_f32 v{40+i%8}, v{60+i%8}" for i in range(128))
    def mf(fmt): return "\n".join(fmt[i%2] for i in range(16))
    m_v = mf(["  v_mfma_f32_32x32x16_bf16 v[16:31], v[60:63], v[64:67], v[16:31]", "  v_mfma_f32_32x32x16_bf16 v[32:47], v[60:63], v[64:67], v[32:47]"])
    m_0 = mf(["  v_mfma_f32_32x32x16_bf16 v[16:31], v[60:63], v[64:67], 0", "  v_mfma_f32_32x32x16_bf16 v[32:47], v[60:63], v[64:67], 0"])
    m_a = mf(["  v_mfma_f32_32x32x16_bf16 a[0:15], v[60:63], v[64:67], a[0:15]", "  v_mfma_f32_32x32x16_bf16 a[16:31], v[60:63], v[64:67], a[16:31]"])
    m_aa = mf(["  v_mfma_f32_32x32x16_bf16 a[0:15], a[32:35], a[36:39], a[0:15]", "  v_mfma_f32_32x32x16_bf16 a[16:31], a[32:35], a[36:39], a[16:31]"])
    m_8 = mf(["  v_mfma_f32_32x32x8_bf16 v[16:31], v[60:61], v[64:65], v[16:31]", "  v_mfma_f32_32x32x8_bf16 v[32:47], v[60:61], v[64:65], v[32:47]"])
    m_16 = mf(["  v_mfma_f32_16x16x32_bf16 v[16:19], v[60:63], v[64:67], v[16:19]", "  v_mfma_f32_16x16x32_bf16 v[32:35], v[60:63], v[64:67], v[32:35]"])
    m_sp = mf(["  v_mfma_f32_32x32x16_bf16 v[16:31], v[60:63], v[64:67], v[16:31]\n s_nop 15\n s_nop 15", "  v_mfma_f32_32x32x16_bf16 v[32:47], v[60:63], v[64:67], v[32:47]\n s_nop 15\n s_nop 15"])
    def E(a, b): return "\n".join(f"  v_exp_f32 v{i}, v{i}" for i in range(a, b))
    def C(d, a): return "\n".join(f"  v_cvt_pk_bf16_f32 v{d+i}, v{a+2*i}, v{a+2*i+1}" for i in range(4))
    attn = "\n".join([
      "  v_mfma_f32_32x32x16_bf16 v[16:31], v[60:63], v[64:67], v[96:111]",
      E(32,40), C(48,32), E(40,42),
      "  v_mfma_f32_32x32x16_bf16 v[80:95], v[68:71], v[48:51], v[80:95]",
      E(42,48), C(52,40),
      "  v_mfma_f32_32x32x16_bf16 v[32:47], v[60:63], v[64:67], v[96:111]",
      E(16,18),
      "  v_mfma_f32_32x32x16_bf16 v[80:95], v[72:75], v[52:55], v[80:95]",
      E(18,24), C(48,16), E(24,26),
      "  v_mfma_f32_32x32x16_bf16 v[80:95], v[68:71], v[48:51], v[80:95]",
      E(26,32), C(52,24), "  s_nop 1",
      "  v_mfma_f32_32x32x16_bf16 v[80:95], v[72:75], v[52:55], v[80:95]",
    ])
    N = 4000
    ks = []; runs = []
    def add(name, A, B, itA, itB, wavesA, blocks, vgpr=128, acc=None):
        ks.append(kernel(name, A, B, itA, itB, wavesA, vgpr, acc))
        for b in blocks: runs.append((name, 256, b, 0))
    add("exp_none", exp, "", N, 0, 4, [512])
    add("exp_mv", exp, m_v, N, N, 4, [512])
    add("exp_m0", exp, m_0, N, N, 4, [512])
    add("exp_ma", exp, m_a, N, N, 4, [512], 128, 80)
    add("exp_maa", exp, m_aa, N, N, 4, [512], 128, 80)
    add("exp_m8", exp, m_8, N, N, 4, [512])
    add("exp_m16", exp, m_16, N, N, 4, [512])
    add("exp_msp", exp, m_sp, N, N//2, 4, [512])
    add("attn2", attn, attn, N, N, 4, [256, 512, 768, 1024], 112)
    emit("mb3.s", ks, runs)
```

```python
from gen3 import kernel, emit
N = 2000
ks = []; runs = []
def add(name, A, B=None, blocks=(512,), vgpr=128, acc=None):
    ks.append(kernel(name, A, B or A, N, N, 4, vgpr, acc))
    for b in blocks: runs.append((name, 256, b, 0))
def rep(f, n=128): return "\n".join("  " + f(i) for i in range(n))
NEW = lambda d, a=8, b=12: f"v_mfma_f32_32x32x16_bf16 v[{d}:{d+15}], v[{a}:{a+3}], v[{b}:{b+3}], v[{d}:{d+15}]"
OLD = lambda d, a=8, b=12: f"v_mfma_f32_32x32x8bf16_1k v[{d}:{d+15}], v[{a}:{a+1}], v[{b}:{b+1}], v[{d}:{d+15}]"
def tile(pos):
    def f(i):
        out = []
        for k in range(16):
            out.append(f"v_exp_f32 v{16+k}, v{32+k}")
            out += pos.get(k, [])
            if k in (7, 15): out += [f"v_cvt_pk_bf16_f32 v{48+h}, v{16+2*h}, v{17+2*h}" for h in range(4)]
        return "\n  ".join(out)
    return rep(f, 8)
add("n3", tile({1: [NEW(64)], 5: [NEW(80)], 9: [NEW(64)]}))
add("n4", tile({1: [NEW(64)], 5: [NEW(80)], 9: [NEW(64)], 13: [NEW(96)]}))
add("o6", tile({1: [OLD(64)], 3: [OLD(64)], 5: [OLD(80)], 7: [OLD(80)], 9: [OLD(64)], 11: [OLD(64)]}))
add("o6b", tile({1: [OLD(64), OLD(64)], 5: [OLD(80), OLD(80)], 9: [OLD(64), OLD(64)]}))
add("o6n1", tile({1: [OLD(64)], 3: [OLD(64)], 5: [OLD(80)], 7: [OLD(80)], 9: [OLD(64)], 11: [OLD(64)], 13: [NEW(96)]}))
add("o8", tile({1: [OLD(64)], 3: [OLD(64)], 5: [OLD(80)], 7: [OLD(80)], 9: [OLD(64)], 11: [OLD(64)], 13: [OLD(96)], 15: [OLD(96)]}))
add("o4n2", tile({1: [OLD(64)], 3: [OLD(64)], 5: [NEW(80)], 9: [OLD(64)], 11: [OLD(64)], 13: [NEW(96)]}))
add("pnew", rep(lambda i: NEW(64 + 16 * (i % 3)), 48))
add("pold", rep(lambda i: OLD(64 + 16 * (i % 3)), 48))
emit("mb24.s", ks, runs)
```
